```python
import torch

def _softmax(x, axis=-1):
    return torch.softmax(x, dim=axis)
def _gelu(x):
    return torch.nn.functional.gelu(x, approximate="tanh")
def _silu(x):
    return torch.nn.functional.silu(x)
def _sigmoid(x):
    return torch.sigmoid(x)
def _layernorm(x, axis=-1, eps=1e-5):
    m = x.mean(dim=axis, keepdim=True)
    v = x.var(dim=axis, keepdim=True, unbiased=False)
    return (x - m) / torch.sqrt(v + eps)
def _scatter_add(tgt, idx, src, axis=0):
    return tgt.clone().index_add_(axis, idx, src)
def _segment_sum(src, seg, n):
    out = torch.zeros((n,) + src.shape[1:], dtype=src.dtype)
    return out.index_add_(0, seg, src)
def _pad(x, pw):
    flat = tuple(v for pair in reversed(pw) for v in pair)
    return torch.nn.functional.pad(x, flat)

kernel_name = 'concat_heads__grouped_kv_mqa__linear_kernel_hedgehog__prompt'

def setup_inputs():

    _w = (lambda a: (lambda t: t.to(torch.bfloat16) if t.is_floating_point() else t)(torch.as_tensor(a)))
    def _A_setup():
        B, S, D, H = 1, 2048, 512, 32
        Dh = D // H
        return {
            "x": _w((lambda *s: torch.randn(*s, dtype=torch.bfloat16) * 0.05)(B, S, D)),
            "wq": _w((lambda *s: torch.randn(*s, dtype=torch.bfloat16) * 1.6)(D, H * Dh)),
            "wk": _w((lambda *s: torch.randn(*s, dtype=torch.bfloat16) * 1.6)(D, Dh)),
            "wv": _w((lambda *s: torch.randn(*s, dtype=torch.bfloat16) * 1.6)(D, Dh)),
            "wo": _w((lambda *s: torch.randn(*s, dtype=torch.bfloat16) * 1.6)(H * Dh, D)),
        }
    _A_in = _A_setup()

    def _B_setup():
        B, S, D, H = 1, 2048, 512, 32
        Dh = D // H
        return {
            "x": _w((lambda *s: torch.randn(*s, dtype=torch.bfloat16) * 0.2)(B, S, D)),
            "wqkv": _w((lambda *s: torch.randn(*s, dtype=torch.bfloat16) * 1.6)(D, 3 * D)),
            "w_phi": _w((lambda *s: torch.randn(*s, dtype=torch.bfloat16) * 1.6)(H, Dh, Dh) * (Dh ** -0.5)),
            "wo": _w((lambda *s: torch.randn(*s, dtype=torch.bfloat16) * 0.8)(D, D)),
        }
    _B_in = _B_setup()

    return {
        "A_x": _A_in["x"],
        "A_wq": _A_in["wq"],
        "A_wk": _A_in["wk"],
        "A_wv": _A_in["wv"],
        "A_wo": _A_in["wo"],
        "B_x": _B_in["x"],
        "B_wqkv": _B_in["wqkv"],
        "B_w_phi": _B_in["w_phi"],
        "B_wo": _B_in["wo"],
    }

def reference(A_x, A_wq, A_wk, A_wv, A_wo, B_x, B_wqkv, B_w_phi, B_wo):
    def _A_ref(x, wq, wk, wv, wo):
        B, S, D = x.shape
        H = 32
        Dh = D // H
        q = (lambda x, *d: x.permute(*d))((x @ wq).reshape(B, S, H, Dh), 0, 2, 1, 3)
        k = x @ wk
        v = x @ wv
        scores = torch.einsum("bhqd,bkd->bhqk", q, k) * (Dh ** -0.5)
        p = _softmax(scores, axis=-1)
        o = torch.einsum("bhqk,bkd->bhqd", p, v)
        return (lambda x, *d: x.permute(*d))(o, 0, 2, 1, 3).reshape(B, S, H * Dh) @ wo

    def _B_ref(x, wqkv, w_phi, wo):
        B, S, D = x.shape
        H = 32; Dh = D // H
        qkv = (lambda x, *d: x.permute(*d))((x @ wqkv).reshape(B, S, 3, H, Dh), 2, 0, 3, 1, 4)
        q, k, v = qkv[0], qkv[1], qkv[2]
        pq = torch.einsum("bhsd,hdf->bhsf", q, w_phi)
        pk = torch.einsum("bhsd,hdf->bhsf", k, w_phi)
        phi_q = torch.concatenate([_softmax(pq, axis=-1), _softmax(-pq, axis=-1)], axis=-1)
        phi_k = torch.concatenate([_softmax(pk, axis=-1), _softmax(-pk, axis=-1)], axis=-1)
        kv = torch.einsum("bhsf,bhsd->bhfd", phi_k, v)
        z  = torch.einsum("bhsf->bhf", phi_k)
        num = torch.einsum("bhqf,bhfd->bhqd", phi_q, kv)
        den = torch.einsum("bhqf,bhf->bhq", phi_q, z)[..., None] + 1e-6
        o = num / den
        return (lambda x, *d: x.permute(*d))(o, 0, 2, 1, 3).reshape(B, S, D) @ wo

    a = _A_ref(A_x, A_wq, A_wk, A_wv, A_wo)
    b = _B_ref(B_x, B_wqkv, B_w_phi, B_wo)
    return torch.concatenate([a, b], axis=-1)
```

```python
import sys
NAME="concat_heads__grouped_kv_mqa__linear_kernel_hedgehog__prompt"
L=[]
def E(*a):
    for x in a:
        if isinstance(x,(list,tuple)): E(*x)
        else: L.append(x)
def vr(a,n): return f"v[{a}:{a+n-1}]"
def mfma(d,a,b,c): return f"v_mfma_f32_32x32x16_bf16 {vr(d,16)}, {vr(a,4)}, {vr(b,4)}, {vr(c,16) if c is not None else 0}"
def cvt(d,s,n=8): return [f"v_cvt_pk_bf16_f32 v{d+i}, v{s+2*i}, v{s+2*i+1}" for i in range(n)]
def nop(n): return [f"s_nop {min(n-i,16)-1}" for i in range(0,n,16)]
XA,WQ,WK,WV,WOA,XB,WQKV,WPHI,WOB,OUT,DBG,WS=[f"s[{8+4*i}:{11+4*i}]" for i in range(12)]
SIZES=[2097152,524288,16384,16384,524288,2097152,1572864,16384,524288,4194304,256,0x600000]
sW,sTB,sHG,sT,sP,sWL,sHI="s56","s57","s58","s59","s60","s61","s62"
sTMP,sTMP2,sIT="s64","s65","s66"
WS_KV,WS_ACC,WS_F2,WS_F4A,WS_F4B,WS_OA,WS_OB,WS_TS=0,0x20000,0x45000,0x41000,0x43000,0x100000,0x300000,0x500000
SLOT=8192
vL,vXO,vW1,vW3,vLIN,vXA,vWA,vT0,vT1=0,1,2,3,4,5,9,10,11
vH,vJ=20,21
vPHI=24
vQ=32
vPQ=40
vD1,vD2=64,80
vFR=96
PROF=len(sys.argv)>1 and 'prof' in sys.argv[1:]
ROUND_PQ=True
PC=5
ts_n=[0]
DIAG=[int(a[4:]) for a in sys.argv if a.startswith('diag')]
def stamp():
    if DIAG:
        if ts_n[0]==DIAG[0]: E("s_memrealtime s[90:91]","s_waitcnt lgkmcnt(0)")
        ts_n[0]+=1
    if not PROF: return
    i=ts_n[0]; ts_n[0]+=1
    if i==0: E("s_memrealtime s[72:73]","s_waitcnt lgkmcnt(0)","v_writelane_b32 v255, s72, 62")
    E(f"s_memtime s[{72+0}:{73}]","s_waitcnt lgkmcnt(0)",f"v_writelane_b32 v255, s72, {i}")
vm=[]
def dma(srd,voff,soff,lds,tag,flags=""):
    E(f"s_add_u32 m0, {sWL}, {lds}", f"s_mov_b32 {sTMP}, {soff}", f"buffer_load_dwordx4 v{voff}, {srd}, {sTMP} offen {flags} lds")
    vm.append(tag)
def vmwait(tag):
    idx=max(i for i,t in enumerate(vm) if t==tag)
    n=len(vm)-1-idx
    del vm[:idx+1]
    E(f"s_waitcnt vmcnt({n})")
def pipe(steps,look=2):
    issued=0
    for i in range(len(steps)):
        while issued<min(len(steps),i+1+look):
            E(steps[issued][0]); issued+=1
        n=sum(len(steps[k][0]) for k in range(i+1,issued))
        assert n<=15
        E(f"s_waitcnt lgkmcnt({n})", steps[i][1])
def rd128(d,a,off): return f"ds_read_b128 {vr(d,4)}, v{a} offset:{off}"
def rdtr(d,a,off,second): return [f"ds_read_b64_tr_b16 {vr(d,2)}, v{a} offset:{off}", f"ds_read_b64_tr_b16 {vr(d+2,2)}, v{a} offset:{off+second}"]

def setup():
    E("s_cmp_ge_u32 s2, 256","s_cbranch_scc1 L_end",
      "s_load_dwordx16 s[64:79], s[0:1], 0","s_load_dwordx8 s[80:87], s[0:1], 64",
      "v_lshrrev_b32 v10, 6, v0","v_and_b32 v0, 63, v0","s_and_b32 s3, s2, 7",
      f"v_readfirstlane_b32 {sW}, v10","s_lshr_b32 s4, s2, 3",f"s_and_b32 {sHG}, s4, 7","s_lshr_b32 s4, s4, 3","s_lshl_b32 s3, s3, 2",
      f"s_add_u32 {sTB}, s3, s4",f"s_and_b32 {sT}, {sW}, 1",f"s_bfe_u32 {sP}, {sW}, 0x10001",f"s_lshl_b32 {sWL}, {sW}, 10",f"s_lshr_b32 {sHI}, {sW}, 2")
    E("v_lshrrev_b32 v11, 3, v0","v_lshl_add_u32 v11, v10, 3, v11","v_and_b32 v12, 7, v0",
      "v_bfe_u32 v13, v11, 1, 3","v_xor_b32 v13, v12, v13","v_lshlrev_b32 v13, 4, v13",
      f"s_lshl_b32 s3, {sTB}, 16",f"v_lshl_add_u32 v{vXO}, v11, 10, v13",f"v_add_u32 v{vXO}, s3, v{vXO}",
      "v_bfe_u32 v13, v11, 1, 1","v_lshlrev_b32 v13, 2, v13","v_xor_b32 v13, v12, v13","v_lshlrev_b32 v13, 4, v13",
      f"s_lshl_b32 s3, {sHG}, 7","v_add_u32 v13, s3, v13",f"v_lshl_add_u32 v{vW1}, v11, 10, v13",
      "v_mul_u32_u24 v14, 3072, v11",f"v_add_u32 v{vW3}, v14, v13",
      f"v_lshlrev_b32 v{vLIN}, 4, v0",f"v_add_u32 v{vLIN}, {sWL}, v{vLIN}",
      "s_waitcnt lgkmcnt(0)")
    for i in range(12):
        E(f"s_mov_b32 s{8+4*i}, s{64+2*i}",f"s_mov_b32 s{9+4*i}, s{65+2*i}",f"s_mov_b32 s{10+4*i}, {SIZES[i]}",f"s_mov_b32 s{11+4*i}, 0x00020000")
    stamp()
    E(f"s_cmp_lg_u32 {sHG}, 0","s_cbranch_scc1 L_nokv0")
    for b in range(2): dma(WK,vLIN,b*8192,(16+b)*SLOT,'x'); dma(WV,vLIN,b*8192,(18+b)*SLOT,'x')
    vm.clear()
    E("L_nokv0:")
    for c in range(8):
        dma(XA,vXO,c*128,(2*c)*SLOT,f"A{c//2}"); dma(WQ,vW1,c*65536,(2*c+1)*SLOT,f"A{c//2}")
    E(f"s_lshl_b32 s3, {sHG}, 1",f"s_add_u32 s3, s3, {sHI}","s_cmp_lg_u32 s3, 1","s_cbranch_scc1 L_nozero",
      f"s_lshl_b32 s3, {sTB}, 12",f"s_add_u32 s4, s3, {WS_ACC-4096}",[f"v_mov_b32 v{12+i}, 0" for i in range(4)],
      f"buffer_store_dwordx4 v[12:15], v{vLIN}, {WS}, s4 offen sc1",f"s_cmp_lg_u32 {sW}, 4","s_cbranch_scc1 L_nozero",
      f"s_lshl_b32 s4, {sTB}, 8","v_lshlrev_b32 v10, 13, v0",f"s_add_u32 s5, s4, {WS_F4A}",
      "s_mov_b64 exec, 7",f"buffer_store_dword v12, v10, {WS}, s5 offen sc1","s_mov_b64 exec, -1","L_nozero:","v_mov_b32 v18, 0")
    E(f"v_lshrrev_b32 v{vH}, 5, v0",f"v_and_b32 v{vJ}, 31, v0")
    E(f"v_lshrrev_b32 v10, 3, v{vJ}","v_and_b32 v11, 3, v0","v_lshl_add_u32 v10, v10, 2, v11","v_lshlrev_b32 v10, 1, v10",
      f"v_lshl_add_u32 v10, v{vH}, 7, v10",f"s_lshl_b32 s3, {sHG}, 11",f"s_lshl_b32 s4, {sP}, 10","s_add_u32 s3, s3, s4")
    for e in range(2):
        for jj in range(8):
            d=(jj&3)+8*(jj>>2)
            E(f"buffer_load_ushort v{192+8*e+jj}, v10, {WPHI}, s3 offen offset:{e*512+d*32}"); vm.append('phi')
    E(f"v_bfe_u32 v10, v{vJ}, 1, 3",f"v_xor_b32 v10, v{vH}, v10",f"s_lshl_b32 s3, {sT}, 12",f"v_lshlrev_b32 v11, 7, v{vJ}","v_add_u32 v11, s3, v11")
    for ks in range(4): E(f"v_xor_b32 v12, {2*ks}, v10",f"v_lshl_add_u32 v{vXA+ks}, v12, 4, v11")
    E("v_bfe_u32 v10, v0, 2, 2",f"v_lshl_add_u32 v11, v{vH}, 3, v10","v_lshrrev_b32 v10, 1, v10",f"v_xor_b32 v10, {sP}, v10","v_lshlrev_b32 v10, 6, v10",
      "v_lshl_add_u32 v10, v11, 7, v10","v_bfe_u32 v12, v0, 4, 1","v_lshl_add_u32 v10, v12, 5, v10","v_and_b32 v12, 3, v0",f"v_lshl_add_u32 v{vWA}, v12, 3, v10",
      "v_lshlrev_b32 v12, 3, v12","v_lshl_add_u32 v22, v11, 5, v12",f"s_lshl_b32 s3, {sP}, 14",f"s_add_u32 s3, s3, {16*SLOT}","v_add_u32 v22, s3, v22")
    E(f"s_add_u32 s63, {sP}, 1",f"s_cmp_lg_u32 {sHG}, 0","s_cselect_b32 s63, 3, s63",f"s_cmp_eq_u32 {sHI}, 0","s_cselect_b32 s63, 0, s63")

def bdma(c):
    s0=[0,4,8,12,16,0,4,8][c]
    dma(XB,vXO,c*128,s0*SLOT,f"B{c}")
    for part in range(3): dma(WQKV,vW3,c*64*3072+part*1024,(s0+1+part)*SLOT,f"B{c}")
def addr_regs(base):
    E([f"v_add_u32 v{10+k}, {base}, v{vXA+k}" for k in range(4)], f"v_add_u32 v14, {base}, v{vWA}")
def phaseA():
    for s in range(4):
        vmwait(f"A{s}"); E("s_barrier")
        if s in(1,2): bdma(s-1)
        E("s_cmp_eq_u32 s63, 3",f"s_cbranch_scc1 L_A{s}_done")
        addr_regs(4*s*SLOT)
        E("s_cmp_eq_u32 s63, 1",f"s_cbranch_scc1 L_A{s}_K","s_cmp_eq_u32 s63, 2",f"s_cbranch_scc1 L_A{s}_V")
        for role in "QKV":
            if role!="Q": E(f"L_A{s}_{role}:")
            st=[]
            for i in range(8):
                c,ks=divmod(i,4); b=vFR+8*(i%4); first=(s==0 and i==0)
                rx=[rd128(b,10+ks,2*c*SLOT)]
                rw=rdtr(b+4,14,(2*c+1)*SLOT+ks*2048,512) if role=="Q" else rdtr(b+4,22,(8*s+i)*512,128)
                m=mfma(vD1,b,b+4,None if first else vD1) if role=="V" else mfma(vD1,b+4,b,None if first else vD1)
                st.append((rx+rw,[m]))
            pipe(st,3)
            if s==3:
                E(nop(12))
                if role=="Q": E(cvt(vQ,vD1))
                else:
                    E(f"s_lshl_b32 s3, {sTB}, 12",f"s_lshl_b32 s4, {sT}, 11","s_add_u32 s3, s3, s4")
                    if role=="K":
                        E("s_mov_b32 s4, 0x3eb8aa3b",[f"v_mul_f32 v{vD1+i}, s4, v{vD1+i}" for i in range(8)],cvt(16,vD1,4),
                          "v_lshlrev_b32 v10, 4, v0",f"buffer_store_dwordx4 v[16:19], v10, {WS}, s3 offen sc1")
                    else:
                        E(cvt(vFR,vD1),"v_and_b32 v10, 15, v0","v_lshlrev_b32 v10, 4, v10",f"v_lshl_add_u32 v10, v{vH}, 8, v10",
                          f"buffer_store_dwordx4 {vr(vFR,4)}, v10, {WS}, s3 offen offset:1024 sc1",
                          f"buffer_store_dwordx4 {vr(vFR+4,4)}, v10, {WS}, s3 offen offset:1536 sc1")
            if role!="V": E(f"s_branch L_A{s}_done")
        E(f"L_A{s}_done:")
    bdma(2)
    stamp()
def poll(name,srd,voff,soff,target,issue=True,slp=2):
    E(f"s_mov_b32 {sTMP2}, 0x40000")
    if not issue: E(f"s_branch L_pc_{name}")
    E(f"L_p_{name}:",f"buffer_load_dword v19, v{voff}, {srd}, {soff} offen sc1")
    E(f"L_pc_{name}:","s_waitcnt vmcnt(0)",f"v_cmp_ne_u32 vcc, {target}, v19",f"s_sub_u32 {sTMP2}, {sTMP2}, 1",f"s_cbranch_scc1 L_pd_{name}",
      "s_cmp_eq_u64 vcc, 0",f"s_cbranch_scc1 L_pd_{name}",f"s_sleep {slp}",f"s_branch L_p_{name}",f"L_pd_{name}:")
def kvdma(half):
    for g in range(2):
        for b in range(4): dma(WS,vLIN,WS_KV+(g*8+half*4+b)*8192,((12 if half==0 else 0)+g*4+b)*SLOT,f"KV{half}","sc1")
def softmax16(D,dst):
    if ROUND_PQ:
        E(cvt(dst,D))
        for i in range(8): E(f"v_lshlrev_b32 v{D+2*i}, 16, v{dst+i}",f"v_and_b32 v{D+2*i+1}, 0xffff0000, v{dst+i}")
    E(f"v_max3_f32 v10, v{D}, v{D+1}, v{D+2}",[f"v_max3_f32 v10, v10, v{D+3+2*i}, v{D+4+2*i}" for i in range(6)],f"v_max_f32 v10, v10, v{D+15}",
      [f"v_sub_f32 v{D+i}, v{D+i}, v10" for i in range(16)],[f"v_mul_f32 v{D+i}, 0x3fb8aa3b, v{D+i}" for i in range(16)],
      [f"v_exp_f32 v{D+i}, v{D+i}" for i in range(16)],
      f"v_add_f32 v10, v{D}, v{D+1}",[f"v_add_f32 v10, v10, v{D+i}" for i in range(2,16)],"v_rcp_f32 v10, v10","s_nop 0",
      [f"v_mul_f32 v{D+i}, v10, v{D+i}" for i in range(16)],cvt(dst,D))
vKV0,vKV1=160,176
def phaseB():
    for c in range(8):
        s0=[0,4,8,12,16,0,4,8][c]
        vmwait(f"B{c}"); E("s_barrier")
        if c==1:
            E(f"s_lshl_b32 s3, {sHG}, 3",f"s_add_u32 s3, s3, {sW}","s_cmp_lg_u32 s3, 4","s_cbranch_scc1 L_noflag",f"s_lshl_b32 s3, {sTB}, 2","v_mov_b32 v10, 1",
              "s_mov_b64 exec, 1",f"buffer_store_dword v10, off, {DBG}, s3 sc1","s_mov_b64 exec, -1","L_noflag:")
        if c==0: bdma(3); bdma(4)
        elif c<=3: bdma(c+4)
        if c==PC+1: stamp(); kvdma(0)
        addr_regs(s0*SLOT)
        E(f"s_cmp_lg_u32 {sHI}, 0",f"s_cbranch_scc1 L_B{c}_q")
        st=[]
        for ks in range(4):
            b=vFR+12*ks; f=(c==0 and ks==0)
            st.append(([rd128(b,10+ks,0)]+rdtr(b+4,14,2*SLOT+ks*2048,512)+rdtr(b+8,14,3*SLOT+ks*2048,512),
                       [mfma(vD1,b+4,b,None if f else vD1),mfma(vD2,b,b+8,None if f else vD2)]))
        pipe(st,2)
        E(f"s_branch L_B{c}_done",f"L_B{c}_q:")
        st=[]
        for ks in range(4):
            b=vFR+12*ks; f=(c==0 and ks==0)
            st.append(([rd128(b,10+ks,0)]+rdtr(b+4,14,SLOT+ks*2048,512),[mfma(vD1,b+4,b,None if f else vD1)]))
        pipe(st,3)
        E(f"L_B{c}_done:")
        if c==PC:
            stamp()
            E(f"s_cmp_lg_u32 {sW}, 7","s_cbranch_scc1 L_pd_f1",f"v_lshlrev_b32 v18, 2, v{vJ}"); poll("f1",DBG,18,0,"1",slp=4)
    E("s_barrier"); kvdma(1)
    stamp()
    E("v_bfe_u32 v10, v0, 2, 1","v_mul_u32_u24 v10, 0x8000, v10","v_lshl_add_u32 v10, v10, 16, v10",[f"v_lshl_or_b32 v{vPHI+i}, v{193+2*i}, 16, v{192+2*i}" for i in range(8)],[f"v_xor_b32 v{vPHI+i}, v10, v{vPHI+i}" for i in range(8)])
    E(cvt(vFR,vD1),f"s_cmp_lg_u32 {sHI}, 0","s_cbranch_scc1 L_Bq")
    E(f"v_lshlrev_b32 v11, 1, v{vLIN}",f"v_add_u32 v11, {11*SLOT}, v11",f"ds_write_b128 v11, {vr(vQ,4)}",f"ds_write_b128 v11, {vr(vQ+4,4)} offset:16")
    E(mfma(128,vPHI,vFR,None),mfma(144,vPHI+4,vFR+4,None),cvt(vFR+8,vD2))
    E(f"v_lshlrev_b32 v10, 4, v{vH}",f"v_sub_u32 v10, v{vJ}, v10","v_mov_b32 v11, 0x3f80","v_mov_b32 v12, 0x3f800000")
    for i in range(8):
        E(f"v_cmp_eq_u32 vcc, {2*i}, v10",f"v_cmp_eq_u32 s[4:5], {2*i+1}, v10","s_nop 0",f"v_cndmask_b32 v{112+i}, 0, v11, vcc",f"v_cndmask_b32 v{112+i}, v{112+i}, v12, s[4:5]")
    for e in range(2):
        D=128+16*e
        softmax16(D,120)
        E("s_nop 1",mfma(D,120,112,None),mfma(D,124,116,D))
        E(f"v_cmp_{'gt' if e==0 else 'le'}_u32 vcc, 16, v{vJ}","v_mov_b32 v11, 0x3f803f80","s_nop 0",[f"v_cndmask_b32 v{vD1+i}, v11, v{vFR+8+i}, vcc" for i in range(8)],"s_nop 2")
        E(cvt(vD2,D),"s_nop 1",mfma(vKV0+16*e,vD1,vD2,None),mfma(vKV0+16*e,vD1+4,vD2+4,vKV0+16*e))
    E(f"s_lshl_b32 s3, {sHG}, 14",f"s_lshl_b32 s4, {sP}, 13","s_add_u32 s3, s3, s4",f"s_add_u32 s3, s3, {WS_ACC}","s_add_u32 s4, s3, 4096",
      f"v_lshlrev_b32 v10, 2, v{vJ}",f"v_lshl_add_u32 v10, v{vH}, 9, v10",nop(8))
    for e in range(2):
        for r in range(9):
            reg=(vKV0+r) if e==0 else (vKV1+8+r if r<8 else vKV1)
            E(f"buffer_atomic_add_f32 v{reg}, v10, {WS}, s{3+e} offen offset:{((r&3)+8*(r>>2))*128}")
    E("s_waitcnt vmcnt(18) lgkmcnt(0)","s_branch L_Bd","L_Bq:","s_nop 1")
    E(mfma(128,vPHI,vFR,None),mfma(144,vPHI+4,vFR+4,None),nop(12))
    for e in range(2): softmax16(128+16*e,vPQ+8*e)
    E("s_waitcnt vmcnt(0)","L_Bd:","s_barrier")
    vm.clear()
    stamp()
```

```python
from g1 import *
vSa,vSb,vCa,vCb,vOa,vOb=64,80,96,112,128,144
vPa,vPb,vK,vV=192,200,208,212
vKA,vVA=22,23
vOF=220
MASK="s[68:69]"
def phase(S,P,m0,m1,m2,after0,after2,pre1):
    e=[f"v_exp_f32 v{S+i}, v{S+i}" for i in range(16)]; c=cvt(P,S)
    E(m0,after0,e[0:3],c[0],e[3],pre1,m1,e[4],c[1],e[5:7],c[2],e[7],m2,after2,e[8],c[3],e[9:11],c[4],e[11:13],c[5],e[13:16],c[6],c[7])
def vread(off): return [f"s_mov_b64 exec, {MASK}",rd128(vV,vVA,off+1024),rd128(vV+4,vVA,off+1536),"s_mov_b64 exec, -1"]
def colmax(S,dst):
    E(f"v_max3_f32 v{dst}, v{S}, v{S+1}, v{S+2}",[f"v_max3_f32 v{dst}, v{dst}, v{S+3+2*i}, v{S+4+2*i}" for i in range(6)],f"v_max_f32 v{dst}, v{dst}, v{S+15}")
def halfmax(r):
    E(f"v_mov_b32 v12, v{r}","s_nop 1",f"v_permlane32_swap_b32 v12, v{r}","s_nop 1",f"v_max_f32 v{r}, v12, v{r}")
def attention():
    E("s_mov_b32 s68, 0xffff","s_mov_b32 s69, 0xffff",
      f"s_lshl_b32 s3, {sHI}, 15",f"s_add_u32 s3, s3, {12*SLOT}",f"v_lshlrev_b32 v10, 4, v0",f"v_add_u32 v{vKA}, s3, v10",
      f"v_add_u32 v11, {12*SLOT}, v10",rd128(vK,11,0),
      f"v_and_b32 v12, 0xfff, v{vLIN}","v_lshlrev_b32 v12, 1, v12",f"v_add_u32 v12, {11*SLOT}, v12",rd128(vQ,12,0),rd128(vQ+4,12,16),
      "v_and_b32 v10, 15, v0","v_lshlrev_b32 v10, 4, v10",f"v_lshl_add_u32 v10, v{vH}, 8, v10",f"v_add_u32 v{vVA}, s3, v10",
      [f"v_mov_b32 v{vV+i}, 0x3f803f80" for i in range(8)],[f"v_mov_b32 v{vPb+i}, 0" for i in range(8)],
      "s_waitcnt lgkmcnt(0)",mfma(vSa,vK,vQ,None),mfma(vSb,vK,vQ+4,None),rd128(vK,vKA,0),
      [f"v_mov_b32 v{vOa+i}, 0" for i in range(32)])
    colmax(vSa,10); colmax(vSb,11); halfmax(10); halfmax(11)
    E([f"v_sub_f32 v{vCa+i}, 0, v10" for i in range(16)],[f"v_sub_f32 v{vCb+i}, 0, v11" for i in range(16)],
      "s_waitcnt lgkmcnt(0)",mfma(vSa,vK,vQ,vCa),f"s_mov_b32 {sIT}, 0","s_mov_b32 s67, 8192",nop(10))
    stamp()
    E(".p2align 6","L_att:")
    for n in range(4):
        kr=[rd128(vK,vKA,(n+1)*2048)] if n<3 else [f"v_add_u32 v{vKA}, s67, v{vKA}",rd128(vK,vKA,0)]
        phase(vSa,vPa,mfma(vSb,vK,vQ+4,vCb),mfma(vOb,vV,vPb,vOb),mfma(vOb,vV+4,vPb+4,vOb),kr,vread(n*2048),[])
        E("s_waitcnt lgkmcnt(2)")
        tail=[f"v_add_u32 v{vVA}, s67, v{vVA}",f"s_add_u32 {sIT}, {sIT}, 1",f"s_cmp_eq_u32 {sIT}, 3",f"s_cselect_b32 s67, {(-15*SLOT)&0xffffffff}, 8192"] if n==3 else []
        if n==3: tail=tail[:3]+[f"s_mov_b32 s67, 8192",f"s_cselect_b32 s67, {(-15*SLOT)&0xffffffff}, s67"]
        phase(vSb,vPb,mfma(vSa,vK,vQ,vCa),mfma(vOa,vV,vPa,vOa),mfma(vOa,vV+4,vPa+4,vOa),[],tail,["s_waitcnt lgkmcnt(0)"])
    E(f"s_bitcmp1_b32 {0b111010100}, {sIT}","s_cbranch_scc0 L_att")
    E(f"s_cmp_eq_u32 {sIT}, 8","s_cbranch_scc1 L_att_done",f"s_cmp_eq_u32 {sIT}, 4","s_cbranch_scc1 L_h4",
      f"s_cmp_eq_u32 {sIT}, 6","s_cbranch_scc1 L_h6",f"s_cmp_eq_u32 {sIT}, 7","s_cbranch_scc1 L_h7")
    E(f"s_cmp_lg_u32 {sHI}, 0","s_cbranch_scc1 L_att",f"s_lshl_b32 s3, {sHG}, 8",f"s_add_u32 s3, s3, {WS_F2}","v_mov_b32 v10, 1","s_waitcnt vmcnt(0)",
      "s_mov_b64 exec, 1",f"buffer_atomic_add v10, off, {WS}, s3","s_mov_b64 exec, -1","s_branch L_att")
    E("L_h4:","s_barrier")
    for c in range(8): dma(WOB,vW1,c*65536,(12+c)*SLOT,'wob')
    E(f"s_cmp_eq_u32 {sHI}, 0","s_cbranch_scc1 L_att",f"s_lshl_b32 s3, {sHG}, 8",f"s_add_u32 s3, s3, {WS_F2}","v_mov_b32 v18, 0","s_movk_i32 s4, 128")
    poll("f2",WS,18,"s3","s4")
    E(f"s_lshl_b32 s3, {sHG}, 14",f"s_lshl_b32 s4, {sP}, 13","s_add_u32 s3, s3, s4",f"s_add_u32 s3, s3, {WS_ACC}","s_add_u32 s4, s3, 4096",
      f"v_min_u32 v10, 16, v{vJ}","v_lshlrev_b32 v10, 7, v10",f"v_lshl_add_u32 v10, v{vH}, 6, v10")
    for e in range(2):
        for i in range(4): E(f"buffer_load_dwordx4 {vr(vOF+16*e+4*i,4)}, v10, {WS}, s{3+e} offen offset:{16*i} sc1")
    E(f"s_lshl_b32 s3, {sTB}, 16",f"s_lshl_b32 s4, {sT}, 15","s_add_u32 s3, s3, s4",f"s_lshl_b32 s4, {sHG}, 12","s_add_u32 s3, s3, s4",
      f"s_lshl_b32 s4, {sP}, 11","s_add_u32 s3, s3, s4",f"s_add_u32 s3, s3, {WS_OB}","v_lshlrev_b32 v10, 4, v0","s_waitcnt vmcnt(0)")
    E(cvt(vOF,vOF,16),"s_nop 1")
    for e in range(2): E(mfma(160+16*e,vOF+8*e,vPQ+8*e,None),mfma(160+16*e,vOF+8*e+4,vPQ+8*e+4,160+16*e))
    E(nop(11))
    for e in range(2):
        D=160+16*e
        E(f"v_add_f32 v11, 0x358637bd, v{D+8}","v_rcp_f32 v11, v11","s_nop 0",[f"v_mul_f32 v{D+i}, v11, v{D+i}" for i in range(8)],cvt(12+4*e,D,4),
          f"buffer_store_dwordx4 {vr(12+4*e,4)}, v10, {WS}, s3 offen offset:{1024*e} sc1")
    E(f"s_lshl_b32 s3, {sTB}, 8",f"s_add_u32 s3, s3, {WS_F4B}","v_mov_b32 v10, 1","s_waitcnt vmcnt(0)",
      "s_mov_b64 exec, 1",f"buffer_atomic_add v10, off, {WS}, s3","s_mov_b64 exec, -1","s_branch L_att")
    E("L_h6:",f"s_lshl_b32 s3, {sTB}, 8",f"s_add_u32 s3, s3, {WS_F4B}","v_mov_b32 v18, 0",f"buffer_load_dword v19, v18, {WS}, s3 offen sc1","s_branch L_att")
    E("L_h7:"); poll("f4b",WS,18,"s3","32",issue=False)
    ofrags(WS_OB); E("s_branch L_att")
    E("L_att_done:","s_nop 1",mfma(vOb,vV,vPb,vOb),mfma(vOb,vV+4,vPb+4,vOb))
    stamp()
def ofrags(base):
    E(f"s_lshl_b32 s3, {sTB}, 16",f"s_lshl_b32 s4, {sT}, 15","s_add_u32 s3, s3, s4",f"s_lshr_b32 s4, {sW}, 1","s_lshl_b32 s4, s4, 13","s_add_u32 s3, s3, s4",
      f"s_add_u32 s3, s3, {base}","s_add_u32 s4, s3, 4096","v_lshlrev_b32 v10, 4, v0")
    for i in range(8): E(f"buffer_load_dwordx4 {vr(vOF+4*i,4)}, v10, {WS}, s{3+i//4} offen offset:{(i%4)*1024} sc1")
def finish_att():
    E(f"v_mul_u32_u24 v10, 3, v{vLIN}",f"v_add_u32 v10, {8*SLOT}, v10",f"v_xor_b32 v11, 0x1000, v{vLIN}","v_mul_u32_u24 v11, 3, v11",f"v_add_u32 v11, {8*SLOT}, v11",
      nop(8),f"s_cmp_eq_u32 {sHI}, 0","s_cbranch_scc1 L_noswap",[f"v_swap_b32 v{vOa+i}, v{vOb+i}" for i in range(9)],[f"v_mov_b32 v{vQ+i}, v{vQ+4+i}" for i in range(4)],"L_noswap:",
      [f"ds_write_b128 v11, {vr(vOb+4*i,4)} offset:{16*i}" for i in range(3)],"s_waitcnt lgkmcnt(0)","s_barrier",
      [rd128(vOb+4*i,10,16*i) for i in range(3)],"s_waitcnt lgkmcnt(0)",[f"v_add_f32 v{vOa+i}, v{vOa+i}, v{vOb+i}" for i in range(9)])
    E(f"v_max3_f32 v10, abs(v{vOa}), abs(v{vOa+1}), abs(v{vOa+2})",[f"v_max3_f32 v10, v10, abs(v{vOa+3+2*i}), abs(v{vOa+4+2*i})" for i in range(3)],
      "s_mov_b32 s3, 0x7b800000",f"v_cmp_nle_f32 vcc, v10, s3",f"v_cmp_nle_f32 s[4:5], v{vOa+8}, s3","s_or_b64 vcc, vcc, s[4:5]")
    for i in range(8): E(f"v_cmp_u_f32 s[4:5], v{vOa+i}, v{vOa+i}","s_or_b64 vcc, vcc, s[4:5]")
    E("s_cmp_lg_u64 vcc, 0","s_cbranch_scc1 L_fb","L_fb_ret:")
    E(f"v_rcp_f32 v11, v{vOa+8}",f"s_lshl_b32 s3, {sTB}, 16",f"s_lshl_b32 s4, {sT}, 15","s_add_u32 s3, s3, s4",f"s_lshl_b32 s4, {sHG}, 12","s_add_u32 s3, s3, s4",
      f"s_lshl_b32 s4, {sP}, 11","s_add_u32 s3, s3, s4",f"s_lshl_b32 s4, {sHI}, 10","s_add_u32 s3, s3, s4",f"s_add_u32 s3, s3, {WS_OA}","v_lshlrev_b32 v10, 4, v0",
      [f"v_mul_f32 v{vOa+i}, v11, v{vOa+i}" for i in range(8)],cvt(12,vOa,4),f"buffer_store_dwordx4 v[12:15], v10, {WS}, s3 offen sc1")
    for c in range(8): dma(WOA,vW1,c*65536,c*SLOT,'woa')
def fallback():
    E("L_fb:","v_lshlrev_b32 v13, 4, v0","v_mov_b32 v14, 0xff800000","s_mov_b32 s3, 0","L_fb1:",
      f"buffer_load_dwordx4 {vr(vK,4)}, v13, {WS}, s3 offen sc1","s_waitcnt vmcnt(0)",mfma(vSa,vK,vQ,None),nop(12))
    colmax(vSa,10)
    E("v_max_f32 v14, v14, v10","s_add_u32 s3, s3, 2048","s_cmp_lt_u32 s3, 0x20000","s_cbranch_scc1 L_fb1")
    halfmax(14)
    E([f"v_sub_f32 v{vCa+i}, 0, v14" for i in range(16)],[f"v_mov_b32 v{vOa+i}, 0" for i in range(16)],
      "v_and_b32 v15, 15, v0","v_lshlrev_b32 v15, 4, v15",f"v_lshl_add_u32 v15, v{vH}, 8, v15","s_mov_b32 s3, 0","L_fb2:",
      f"buffer_load_dwordx4 {vr(vK,4)}, v13, {WS}, s3 offen sc1",f"s_mov_b64 exec, {MASK}",
      f"buffer_load_dwordx4 {vr(vV,4)}, v15, {WS}, s3 offen offset:1024 sc1",f"buffer_load_dwordx4 {vr(vV+4,4)}, v15, {WS}, s3 offen offset:1536 sc1",
      "s_mov_b64 exec, -1","s_waitcnt vmcnt(0)",mfma(vSa,vK,vQ,vCa),nop(12),[f"v_exp_f32 v{vSa+i}, v{vSa+i}" for i in range(16)],"s_nop 0",cvt(vPa,vSa),"s_nop 1",
      mfma(vOa,vV,vPa,vOa),mfma(vOa,vV+4,vPa+4,vOa),nop(12),"s_add_u32 s3, s3, 2048","s_cmp_lt_u32 s3, 0x20000","s_cbranch_scc1 L_fb2","s_branch L_fb_ret")
vWF=96
def wfrags(slot0):
    for i in range(8):
        for ct in range(2): E(rdtr(vWF+8*i+4*ct,16+ct,slot0*SLOT+i*2048,1024))
def omfma(waits):
    for i in range(8):
        E(waits(i))
        for ct in range(2): E(mfma(64+16*ct,vWF+8*i+4*ct,vOF+4*i,None if i==0 else 64+16*ct))
def exchange(col0):
    E([f"ds_write_b128 v5, {vr(64+8*q+4*u,4)} offset:{q*16384+u*1024}" for q in range(4) for u in range(2)],"s_waitcnt lgkmcnt(0)","s_barrier",
      [rd128(64+8*q+4*u,6,q*2048+u*1024) for q in range(4) for u in range(2)],"s_waitcnt lgkmcnt(4)",
      [f"v_add_f32 v{64+i}, v{64+i}, v{72+i}" for i in range(8)],"s_waitcnt lgkmcnt(0)",[f"v_add_f32 v{80+i}, v{80+i}, v{88+i}" for i in range(8)],
      [f"v_add_f32 v{64+i}, v{64+i}, v{80+i}" for i in range(8)],cvt(72,64,4),f"buffer_store_dwordx4 v[72:75], v7, {OUT}, 0 offen offset:{col0}")
def outproj():
    E(f"s_lshr_b32 s6, {sW}, 1","v_bfe_u32 v10, v0, 2, 2",f"v_lshl_add_u32 v11, v{vH}, 2, v10","v_lshlrev_b32 v11, 7, v11","v_lshrrev_b32 v10, 1, v10","v_lshl_add_u32 v11, v10, 6, v11",
      "v_bfe_u32 v10, v0, 4, 1","v_lshl_add_u32 v11, v10, 5, v11","v_and_b32 v10, 1, v0","v_lshl_add_u32 v11, v10, 4, v11","v_bfe_u32 v10, v0, 1, 1","v_lshl_add_u32 v11, v10, 3, v11",
      "s_lshl_b32 s3, s6, 14",f"s_add_u32 s4, s3, {12*SLOT}","v_add_u32 v16, s4, v11","v_xor_b32 v17, 64, v16")
    wfrags(0)
    E("v_lshlrev_b32 v10, 4, v0",f"s_lshl_b32 s4, {sT}, 13",f"s_add_u32 s4, s4, {12*SLOT}","s_lshl_b32 s5, s6, 11","s_add_u32 s5, s5, s4","v_add_u32 v5, s5, v10",
      "s_add_u32 s5, s3, s4","v_add_u32 v6, s5, v10",
      f"s_lshl_b32 s3, {sTB}, 17",f"s_lshl_b32 s4, {sT}, 16","s_add_u32 s3, s3, s4",f"s_lshl_b32 s4, {sHG}, 7","s_add_u32 s3, s3, s4","s_lshl_b32 s4, s6, 5","s_add_u32 s3, s3, s4",
      f"v_lshlrev_b32 v7, 11, v{vJ}",f"v_lshl_add_u32 v7, v{vH}, 4, v7","v_add_u32 v7, s3, v7",
      "s_waitcnt vmcnt(9) lgkmcnt(0)")
    omfma(lambda i:[])
    E(f"s_lshl_b32 s3, {sTB}, 8",f"s_add_u32 s3, s3, {WS_F4A}","v_mov_b32 v10, 1","v_mov_b32 v18, 0","s_waitcnt vmcnt(8)",
      "s_mov_b64 exec, 1",f"buffer_atomic_add v10, off, {WS}, s3","s_mov_b64 exec, -1",
      f"v_subrev_u32 v16, {12*SLOT}, v16",f"v_subrev_u32 v17, {12*SLOT}, v17","s_waitcnt vmcnt(1)","s_barrier")
    stamp()
    wfrags(0)
    exchange(1024)
    stamp()
    poll("f4a",WS,18,"s3","64")
    stamp()
    ofrags(WS_OA)
    E("s_barrier")
    omfma(lambda i:[f"s_waitcnt vmcnt({7-i})"])
    E(nop(12))
    exchange(0)
    stamp()
def gen():
    setup(); phaseA(); phaseB(); attention(); finish_att(); outproj()
    if PROF: E("s_memrealtime s[72:73]","s_waitcnt lgkmcnt(0)","v_writelane_b32 v255, s72, 63",f"s_mov_b32 s72, {ts_n[0]}","v_writelane_b32 v255, s72, 61",f"s_lshl_b32 s3, s2, 11",f"s_lshl_b32 s4, {sW}, 8","s_add_u32 s3, s3, s4",f"s_add_u32 s3, s3, {WS_TS}","v_lshlrev_b32 v10, 2, v0",f"buffer_store_dword v255, v10, {WS}, s3 offen")
    if DIAG: E("L_dg:","s_sleep 1","s_memrealtime s[92:93]","s_waitcnt lgkmcnt(0)","s_sub_u32 s92, s92, s90","s_cmp_lt_u32 s92, 6000","s_cbranch_scc1 L_dg")
    E("L_end:","s_endpgm")
    fallback()
    ref=open(f"cdna_kernels/{NAME}.s.ref").read().split("\n")
    i0=[i for i,l in enumerate(ref) if l.startswith(NAME+"_kernel:")][0]; i1=ref.index("s_endpgm")
    head=[l if not l.startswith("; @launch") else "; @launch grid=(256,1,1) block=(512,1,1) lds=163840" for l in ref[:i0+1]]
    body=[l if l.endswith(":") or l.startswith(".") else "    "+l for l in L]
    out=[a for a in sys.argv[1:] if a.endswith(".s")]
    open(out[0] if out else f"cdna_kernels/{NAME}.s","w").write("\n".join(head+body+ref[i1+1:]))
gen()
```

```python
import sys
NAME="concat_heads__grouped_kv_mqa__linear_kernel_hedgehog__prompt"
L=[]
def E(*a):
    for x in a:
        if isinstance(x,(list,tuple)): E(*x)
        else: L.append(x)
def vr(a,n): return f"v[{a}:{a+n-1}]"
def mfma(d,a,b,c): return f"v_mfma_f32_32x32x16_bf16 {vr(d,16)}, {vr(a,4)}, {vr(b,4)}, {vr(c,16) if c is not None else 0}"
def cvt(d,s,n=8): return [f"v_cvt_pk_bf16_f32 v{d+i}, v{s+2*i}, v{s+2*i+1}" for i in range(n)]
def nop(n): return [f"s_nop {min(n-i,16)-1}" for i in range(0,n,16)]
XA,WQ,WK,WV,WOA,XB,WQKV,WPHI,WOB,OUT,DBG,WS=[f"s[{8+4*i}:{11+4*i}]" for i in range(12)]
SIZES=[2097152,524288,16384,16384,524288,2097152,1572864,16384,524288,4194304,256,0x800000]
sW,sTB,sHG,sT,sP,sWL,sHI="s56","s57","s58","s59","s60","s61","s62"
sTMP,sTMP2,sIT="s64","s65","s66"
WS_KV,WS_ACC,WS_F2,WS_F4A,WS_F4B,WS_OA,WS_OB,WS_TS=0,0x600000,0x45000,0x41000,0x43000,0x100000,0x300000,0x500000
SLOT=8192
vL,vXO,vW1,vW3,vLIN,vXA,vWA,vT0,vT1=0,1,2,3,4,5,9,10,11
vH,vJ=20,21
vPHI=24
vQ=32
vPQ=40
vD1,vD2=64,80
vFR=96
PROF=len(sys.argv)>1 and 'prof' in sys.argv[1:]
ROUND_PQ=True
SLP=int(([a[3:] for a in sys.argv if a.startswith('slp')]+['12'])[0])
PC=int(([a[2:] for a in sys.argv if a.startswith('pc')]+['2'])[0])
ts_n=[0]
PERM='perm' in sys.argv
PRI=[int(c) for c in ([a[3:] for a in sys.argv if a.startswith('pri')]+['06'])[0]]
REP=[[f"s_and_b32 s4, {sTB}, {int(a[3:])-1}","s_lshl_b32 s4, s4, 17","s_add_u32 s3, s3, s4","s_add_u32 s3, s3, 0x5e0000"] for a in sys.argv if a.startswith('rep')]
DIAG=[int(a[4:]) for a in sys.argv if a.startswith('diag')]
def stamp():
    if DIAG:
        if ts_n[0]==DIAG[0]: E("s_memrealtime s[96:97]","s_waitcnt lgkmcnt(0)")
        ts_n[0]+=1
    if not PROF: return
    i=ts_n[0]; ts_n[0]+=1
    if i==0: E("s_memrealtime s[72:73]","s_waitcnt lgkmcnt(0)","v_writelane_b32 v63, s72, 62")
    E(f"s_memtime s[{72+0}:{73}]","s_waitcnt lgkmcnt(0)",f"v_writelane_b32 v63, s72, {i}")
vm=[]
def dma(srd,voff,soff,lds,tag,flags=""):
    E(f"s_add_u32 m0, {sWL}, {lds}", f"s_mov_b32 {sTMP}, {soff}", f"buffer_load_dwordx4 v{voff}, {srd}, {sTMP} offen {flags} lds")
    vm.append(tag)
def vmwait(tag):
    idx=max(i for i,t in enumerate(vm) if t==tag)
    n=len(vm)-1-idx
    del vm[:idx+1]
    E(f"s_waitcnt vmcnt({n})")
def pipe(steps,look=2):
    issued=0
    for i in range(len(steps)):
        while issued<min(len(steps),i+1+look):
            E(steps[issued][0]); issued+=1
        n=sum(len(steps[k][0]) for k in range(i+1,issued))
        assert n<=15
        E(f"s_waitcnt lgkmcnt({n})", steps[i][1])
def rd128(d,a,off): return f"ds_read_b128 {vr(d,4)}, v{a} offset:{off}"
def rdtr(d,a,off,second): return [f"ds_read_b64_tr_b16 {vr(d,2)}, v{a} offset:{off}", f"ds_read_b64_tr_b16 {vr(d+2,2)}, v{a} offset:{off+second}"]

def setup():
    E("s_cmp_ge_u32 s2, 256","s_cbranch_scc1 L_end",
      "s_load_dwordx16 s[64:79], s[0:1], 0","s_load_dwordx8 s[80:87], s[0:1], 64",
      "v_lshrrev_b32 v10, 6, v0","v_and_b32 v0, 63, v0","s_and_b32 s3, s2, 7",
      f"v_readfirstlane_b32 {sW}, v10","s_lshr_b32 s4, s2, 3",f"s_and_b32 {sHG}, s4, 7","s_lshr_b32 s4, s4, 3","s_lshl_b32 s3, s3, 2",
      f"s_add_u32 {sTB}, s3, s4",f"s_and_b32 {sT}, {sW}, 1",f"s_bfe_u32 {sP}, {sW}, 0x10001",f"s_lshl_b32 {sWL}, {sW}, 10",f"s_lshr_b32 {sHI}, {sW}, 2")
    E("v_lshrrev_b32 v11, 3, v0","v_lshl_add_u32 v11, v10, 3, v11","v_and_b32 v12, 7, v0",
      "v_bfe_u32 v13, v11, 1, 3","v_xor_b32 v13, v12, v13","v_lshlrev_b32 v13, 4, v13",
      f"s_lshl_b32 s3, {sTB}, 16",f"v_lshl_add_u32 v{vXO}, v11, 10, v13",f"v_add_u32 v{vXO}, s3, v{vXO}",
      "v_bfe_u32 v13, v11, 1, 1","v_lshlrev_b32 v13, 2, v13","v_xor_b32 v13, v12, v13","v_lshlrev_b32 v13, 4, v13",
      f"s_lshl_b32 s3, {sHG}, 7","v_add_u32 v13, s3, v13",f"v_lshl_add_u32 v{vW1}, v11, 10, v13",
      "v_mul_u32_u24 v14, 3072, v11",f"v_add_u32 v{vW3}, v14, v13",
      f"v_lshlrev_b32 v{vLIN}, 4, v0",f"v_add_u32 v{vLIN}, {sWL}, v{vLIN}",
      "s_waitcnt lgkmcnt(0)")
    for i in range(12):
        E(f"s_mov_b32 s{8+4*i}, s{64+2*i}",f"s_mov_b32 s{9+4*i}, s{65+2*i}",f"s_mov_b32 s{10+4*i}, {SIZES[i]}",f"s_mov_b32 s{11+4*i}, 0x00020000")
    stamp()
    E(f"s_cmp_lg_u32 {sHG}, 0","s_cbranch_scc1 L_nokv0")
    for b in range(2): dma(WK,vLIN,b*8192,(16+b)*SLOT,'x'); dma(WV,vLIN,b*8192,(18+b)*SLOT,'x')
    vm.clear()
    E("L_nokv0:")
    for c in range(8): dma(XA,vXO,c*128,c*SLOT,f"X{c//4}")
    E(f"v_lshrrev_b32 v{vH}, 5, v0",f"v_and_b32 v{vJ}, 31, v0")
    E(f"v_lshrrev_b32 v10, 3, v{vJ}","v_and_b32 v11, 3, v0","v_lshl_add_u32 v10, v10, 2, v11","v_lshlrev_b32 v10, 1, v10",
      f"v_lshl_add_u32 v10, v{vH}, 7, v10",f"s_lshl_b32 s4, {sP}, 10",f"s_add_u32 s4, s4, {13*SLOT}","v_add_u32 v16, s4, v10")
    E(f"v_bfe_u32 v10, v{vJ}, 1, 3",f"v_xor_b32 v10, v{vH}, v10",f"s_lshl_b32 s3, {sT}, 12",f"v_lshlrev_b32 v11, 7, v{vJ}","v_add_u32 v11, s3, v11")
    for ks in range(4): E(f"v_xor_b32 v12, {2*ks}, v10",f"v_lshl_add_u32 v{vXA+ks}, v12, 4, v11")
    E("v_bfe_u32 v10, v0, 2, 2",f"v_lshl_add_u32 v11, v{vH}, 3, v10","v_lshrrev_b32 v10, 1, v10",f"v_xor_b32 v10, {sP}, v10","v_lshlrev_b32 v10, 6, v10",
      "v_lshl_add_u32 v10, v11, 7, v10","v_bfe_u32 v12, v0, 4, 1","v_lshl_add_u32 v10, v12, 5, v10","v_and_b32 v12, 3, v0",f"v_lshl_add_u32 v{vWA}, v12, 3, v10",
      "v_lshlrev_b32 v12, 3, v12","v_lshl_add_u32 v22, v11, 5, v12",f"s_lshl_b32 s3, {sP}, 14",f"s_add_u32 s3, s3, {16*SLOT}","v_add_u32 v22, s3, v22")
    E(f"s_add_u32 s63, {sP}, 1",f"s_cmp_lg_u32 {sHG}, 0","s_cselect_b32 s63, 3, s63",f"s_cmp_eq_u32 {sHI}, 0","s_cselect_b32 s63, 0, s63")

def zero_poison():
    E(f"s_cmp_lg_u32 {sHG}, 0","s_cbranch_scc1 L_nozero",
      f"s_lshl_b32 s3, {sTB}, 13",f"s_add_u32 s4, s3, {WS_ACC}",[f"v_mov_b32 v{28+i}, 0" for i in range(4)],
      f"buffer_store_dwordx4 v[28:31], v{vLIN}, {WS}, s4 offen sc1",f"s_cmp_lg_u32 {sW}, 4","s_cbranch_scc1 L_nozero",
      f"s_lshl_b32 s4, {sTB}, 8","v_lshlrev_b32 v10, 13, v0",f"s_add_u32 s5, s4, {WS_F4A}",
      "s_mov_b64 exec, 7",f"buffer_store_dword v28, v10, {WS}, s5 offen sc1","s_mov_b64 exec, -1","L_nozero:","v_mov_b32 v18, 0")
    E(f"s_lshl_b32 s3, {sTB}, 16",f"s_lshl_b32 s4, {sT}, 15","s_add_u32 s3, s3, s4",f"s_lshl_b32 s4, {sHG}, 12","s_add_u32 s3, s3, s4",
      f"s_lshl_b32 s4, {sP}, 11","s_add_u32 s71, s3, s4",f"s_lshl_b32 s4, {sHI}, 10","s_add_u32 s3, s71, s4",f"s_add_u32 s70, s3, {WS_OA}",f"s_add_u32 s71, s71, {WS_OB}",
      [f"v_mov_b32 v{24+i}, -1" for i in range(4)],"v_lshlrev_b32 v10, 4, v0",f"buffer_store_dwordx4 v[24:27], v10, {WS}, s70 offen sc1"); vm.append('po')
BS=[16,0,8,4,0,4,0,4]
def bdma(c):
    dma(XB,vXO,c*128,BS[c]*SLOT,f"B{c}")
    for part in range(3): dma(WQKV,vW3,c*64*3072+part*1024,(BS[c]+1+part)*SLOT,f"B{c}")
def phaseA():
    E(f"v_add_u32 v14, {8*SLOT}, v{vWA}")
    for s in range(4):
        vmwait(["X0","X1","W0","po"][s]); E("s_barrier"); stamp()
        if s<2:
            for c in range(4*s,4*s+4): dma(WQ,vW1,c*65536,(8+c)*SLOT,f"W{s}")
        if s==1: zero_poison()
        if s==2: bdma(0)
        if s==3:
            E(f"s_lshl_b32 s3, {sHG}, 3",f"s_add_u32 s3, s3, {sW}","s_cmp_lg_u32 s3, 4","s_cbranch_scc1 L_noflag",f"s_lshl_b32 s3, {sTB}, 2","v_mov_b32 v10, 1",
              "s_mov_b64 exec, 1",f"buffer_store_dword v10, off, {DBG}, s3 sc1","s_mov_b64 exec, -1","L_noflag:")
            bdma(1); bdma(2)
        if s<2: E("s_cmp_eq_u32 s63, 2",f"s_cbranch_scc1 L_A{s}_V","s_cmp_lg_u32 s63, 1",f"s_cbranch_scc1 L_A{s}_done")
        else: E("s_cmp_lg_u32 s63, 0",f"s_cbranch_scc1 L_A{s}_done")
        for role in ("KV" if s<2 else "Q"):
            if role=="V": E(f"L_A{s}_V:")
            st=[]
            for i in range(16):
                c,ks=divmod(i+16*(s&1),4); b=vFR+8*(i%4); first=(c==0 and ks<2); D=vD1+16*(i&1)
                rx=[rd128(b,vXA+ks,c*SLOT)]
                rw=rdtr(b+4,14,c*SLOT+ks*2048,512) if role=="Q" else rdtr(b+4,22,(4*c+ks)*512,128)
                m=mfma(D,b,b+4,None if first else D) if role=="V" else mfma(D,b+4,b,None if first else D)
                st.append((rx+rw,[m]))
            pipe(st,3)
            sm=lambda n:[f"v_pk_add_f32 {vr(vD1+2*i,2)}, {vr(vD1+2*i,2)}, {vr(vD2+2*i,2)}" for i in range(n)]
            if s==3: E(nop(12),sm(8),cvt(vQ,vD1))
            if s==1:
                E(f"s_lshl_b32 s3, {sTB}, 12",f"s_lshl_b32 s4, {sT}, 11","s_add_u32 s3, s3, s4",nop(9),sm(4 if role=="K" else 8))
                if role=="K":
                    E("s_mov_b32 s4, 0x3eb8aa3b",[f"v_mul_f32 v{vD1+i}, s4, v{vD1+i}" for i in range(8)],cvt(vFR,vD1,4),
                      "v_lshlrev_b32 v10, 4, v0",f"buffer_store_dwordx4 {vr(vFR,4)}, v10, {WS}, s3 offen sc1")
                else:
                    E(cvt(vFR,vD1),"v_and_b32 v10, 15, v0","v_lshlrev_b32 v10, 4, v10",f"v_lshl_add_u32 v10, v{vH}, 8, v10",
                      f"buffer_store_dwordx4 {vr(vFR,4)}, v10, {WS}, s3 offen offset:1024 sc1",
                      f"buffer_store_dwordx4 {vr(vFR+4,4)}, v10, {WS}, s3 offen offset:1536 sc1")
            if role=="K": E(f"s_branch L_A{s}_done")
        E(f"L_A{s}_done:")
    stamp()
def poll(name,srd,voff,soff,target,issue=True,slp=2):
    E(f"s_mov_b32 {sTMP2}, 0x40000")
    if not issue: E(f"s_branch L_pc_{name}")
    E(f"L_p_{name}:",f"buffer_load_dword v19, v{voff}, {srd}, {soff} offen sc1")
    E(f"L_pc_{name}:","s_waitcnt vmcnt(0)",f"v_cmp_ne_u32 vcc, {target}, v19",f"s_sub_u32 {sTMP2}, {sTMP2}, 1",f"s_cbranch_scc1 L_pd_{name}",
      "s_cmp_eq_u64 vcc, 0",f"s_cbranch_scc1 L_pd_{name}",f"s_sleep {slp}",f"s_branch L_p_{name}",f"L_pd_{name}:")
KS=[12,14,16,18,8,10,12,14]
def kvdma(*its):
    for it in its:
        for h in range(2): dma(WS,vLIN,WS_KV+(h*8+it)*8192,(KS[it]+h)*SLOT,f"KV{it}","sc1")
def softmax16(D,dst):
    p=lambda i:vr(D+2*i,2)
    E(f"v_max3_f32 v10, v{D}, v{D+1}, v{D+2}",[f"v_max3_f32 v10, v10, v{D+3+2*i}, v{D+4+2*i}" for i in range(6)],f"v_max_f32 v10, v10, v{D+15}",
      [f"v_pk_add_f32 {p(i)}, {p(i)}, v[10:11] op_sel_hi:[1,0] neg_lo:[0,1] neg_hi:[0,1]" for i in range(8)],[f"v_pk_mul_f32 {p(i)}, {p(i)}, s[6:7]" for i in range(8)],
      [f"v_exp_f32 v{D+i}, v{D+i}" for i in range(16)],
      f"v_pk_add_f32 v[10:11], {p(0)}, {p(1)}",[f"v_pk_add_f32 v[10:11], v[10:11], {p(i)}" for i in range(2,8)],"v_add_f32 v10, v10, v11","v_rcp_f32 v10, v10","s_nop 0",
      [f"v_pk_mul_f32 {p(i)}, {p(i)}, v[10:11] op_sel_hi:[1,0]" for i in range(8)],cvt(dst,D))
vB1,vB2,vBF=160,176,220
def bgemm(cs,pre0=[],pre1=[]):
    c0=cs[0]; base=BS[c0]*SLOT
    if base: E([f"v_add_u32 v{10+k}, {base}, v{vXA+k}" for k in range(4)], f"v_add_u32 v14, {base}, v{vWA}")
    xa,wa=(10,14) if base else (vXA,vWA)
    E(f"s_cmp_lg_u32 {sHI}, 0",f"s_cbranch_scc1 L_B{c0}_q")
    for q in range(2):
        st=[]
        for i in range(4*len(cs)):
            c,ks=cs[i//4],i%4; o=BS[c]*SLOT-base; f=(c==0 and ks==0)
            if q: b=vBF+8*(i%4); st.append(([rd128(b,xa+ks,o)]+rdtr(b+4,wa,o+SLOT+ks*2048,512),[mfma(vB1,b+4,b,None if f else vB1)]))
            else: b=vBF+12*(i%3); st.append(([rd128(b,xa+ks,o)]+rdtr(b+4,wa,o+2*SLOT+ks*2048,512)+rdtr(b+8,wa,o+3*SLOT+ks*2048,512),
                       [mfma(vB1,b+4,b,None if f else vB1),mfma(vB2,b,b+8,None if f else vB2)]))
        E(pre1 if q else pre0); pipe(st,2+q)
        if c0==6: epilogue(q)
        if q==0: E(f"s_branch L_B{c0}_done",f"L_B{c0}_q:")
    E(f"L_B{c0}_done:")
def phaseB():
    E(f"v_and_b32 v15, 0xfff, v{vLIN}","v_lshlrev_b32 v15, 1, v15",f"v_add_u32 v15, {12*SLOT}, v15")
    for c in range(4):
        vmwait(f"B{c}" if c!=2 else "phi"); E("s_barrier")
        if c==0: E(f"s_lshl_b32 s3, {sHG}, 11"); dma(WPHI,vLIN,"s3",13*SLOT,"phi"); bdma(3)
        if c==2: E([f"ds_read_u16 v{192+8*e+jj}, v16 offset:{e*512+((jj&3)+8*(jj>>2))*32}" for e in range(2) for jj in range(8)])
        if c==PC+1: stamp(); kvdma(0,1); bdma(4)
        bgemm([c],[f"ds_write_b128 v15, {vr(vQ,4)}",f"ds_write_b128 v15, {vr(vQ+4,4)} offset:16"] if c==0 else [],[rd128(vQ,15,0),rd128(vQ+4,15,16)] if c==1 else [])
        if c==PC:
            stamp()
            E(f"s_cmp_lg_u32 {sW}, 7","s_cbranch_scc1 L_pd_f1",f"v_lshlrev_b32 v17, 2, v{vJ}"); poll("f1",DBG,17,0,"1",slp=SLP)
    E("v_bfe_u32 v10, v0, 2, 1","v_mul_u32_u24 v10, 0x8000, v10","v_lshl_add_u32 v10, v10, 16, v10",[f"v_lshl_or_b32 v{vPHI+i}, v{193+2*i}, 16, v{192+2*i}" for i in range(8)],[f"v_xor_b32 v{vPHI+i}, v10, v{vPHI+i}" for i in range(8)])
def epilogue(q):
    D0=vBF
    if q:
        E(nop(12),cvt(vB2,vB1),"s_nop 1",mfma(D0,vPHI,vB2,None),mfma(D0+16,vPHI+4,vB2+4,None),nop(12))
        for e in range(2): softmax16(D0+16*e,vPQ+8*e)
        E("s_barrier")
        return
    idn=lambda i:[f"v_cmp_eq_u32 vcc, {i}, v10",f"v_cmp_eq_u32 s[4:5], {i+1}, v10","s_nop 0",f"v_cndmask_b32 v{192+i}, 0, v11, vcc",f"v_cndmask_b32 v{193+i}, 0, v11, s[4:5]"]
    E(f"v_lshlrev_b32 v10, 4, v{vH}",f"v_sub_u32 v10, v{vJ}, v10","v_and_b32 v11, 1, v10","v_lshlrev_b32 v11, 4, v11","v_mov_b32 v12, 0x3f80","v_lshlrev_b32 v11, v11, v12","v_ashrrev_i32 v10, 1, v10",
      idn(0),cvt(40,vB1,16),mfma(D0,vPHI,40,None),mfma(D0+16,vPHI+4,44,None),idn(2),idn(4),idn(6))
    for e in range(2):
        D=D0+16*e
        softmax16(D,80)
        E("s_nop 1",mfma(D,80,192,None),mfma(D,84,196,D))
        E(f"v_cmp_{'gt' if e==0 else 'le'}_u32 vcc, 16, v{vJ}","v_mov_b32 v11, 0x3f803f80","s_nop 0",[f"v_cndmask_b32 v{88+i}, v11, v{48+i}, vcc" for i in range(8)],"s_nop 2")
        E(cvt(80,D),"s_nop 1",mfma(vB1+16*e,88,80,None),mfma(vB1+16*e,92,84,vB1+16*e),"s_nop 1")
    E(f"s_lshl_b32 s3, {sHG}, 2",f"s_add_u32 s3, s3, {sW}","s_lshl_b32 s3, s3, 1",f"s_and_b32 s4, {sTB}, 1","s_add_u32 s3, s3, s4","s_lshl_b32 s3, s3, 12",f"s_add_u32 s3, s3, {WS_ACC}",
      f"v_lshlrev_b32 v10, 2, v{vJ}",f"v_lshl_add_u32 v10, v{vH}, 9, v10",
      f"v_mul_u32_u24 v11, 3, v{vLIN}",f"v_add_u32 v11, {12*SLOT}, v11",f"v_xor_b32 v12, 0x400, v{vLIN}","v_mul_u32_u24 v12, 3, v12",f"v_add_u32 v12, {12*SLOT}, v12",
      f"s_cmp_eq_u32 {sT}, 0","s_cbranch_scc1 L_kvns",[f"v_swap_b32 v{160+i}, v{184+i}" for i in range(8)],"v_swap_b32 v168, v176","L_kvns:",
      "ds_write_b128 v12, v[184:187]","ds_write_b128 v12, v[188:191] offset:16","ds_write_b32 v12, v176 offset:32","s_waitcnt lgkmcnt(0)","s_barrier",
      rd128(184,11,0),rd128(188,11,16),"ds_read_b32 v176, v11 offset:32","s_waitcnt lgkmcnt(0)",[f"v_add_f32 v{160+i}, v{160+i}, v{184+i}" for i in range(8)],"v_add_f32 v168, v168, v176")
    for r in range(9): E(f"buffer_atomic_add_f32 v{160+r}, v10, {WS}, s3 offen offset:{((r&3)+8*(r>>2))*128}")
vGA,vGB=56,57
def ldma(g):
    d=lambda k:[f"s_add_u32 m0, s{74+g}, {k*SLOT}","s_nop 0",f"buffer_load_dwordx4 v{vGB if k else vGA}, {'s[80:83]' if k else 's[76:79]'}, s{84+4*g+k} offen sc1 lds"]
    return [f"s_bitcmp1_b32 {[0b01110011,0b01100011][g]}, {sIT}",f"s_cbranch_scc0 L_ld{g}",d(0),d(1),d(2),d(3),f"L_ld{g}:"]
def lset(sa,va,sb,vb,b1,b2,offs):
    for srd,d in ((sa,76),(sb,80)):
        r=int(srd[2:srd.index(':')]); E(f"s_mov_b64 s[{d}:{d+1}], s[{r}:{r+1}]",f"s_mov_b64 s[{d+2}:{d+3}], s[{r+2}:{r+3}]")
    E(f"v_mov_b32 v{vGA}, v{va}",f"v_mov_b32 v{vGB}, v{vb}",f"s_add_u32 s74, {sWL}, {b1*SLOT}",f"s_add_u32 s75, {sWL}, {b2*SLOT}",
      [f"s_mov_b32 s{84+i}, {o}" for i,o in enumerate(offs)])
def loff(): pass
def kvo(its): return [(h*8+it)*8192 for it in its for h in range(2)]
```

```python
from g1 import *
vSa,vSb,vCa,vCb,vOa,vOb=64,80,96,112,128,144
vPa,vPb,vK,vV=192,200,208,212
vKA,vVA=22,23
vOF=220
MASK="s[68:69]"
def phase(S,P,m0,m1,m2,after0,after2,pre1):
    e=[f"v_exp_f32 v{S+i}, v{S+i}" for i in range(16)]; c=[f"v_perm_b32 v{P+i}, v{S+2*i+1}, v{S+2*i}, s92" for i in range(8)] if PERM else cvt(P,S)
    E(m0,after0,e[0:3],c[0],e[3],pre1,m1,e[4],c[1],e[5:7],c[2],e[7],m2,after2,e[8],c[3],e[9:11],c[4],e[11:13],c[5],e[13:16],c[6],c[7])
def vread(off): return [f"s_mov_b64 exec, {MASK}",rd128(vV,vVA,off+1024),rd128(vV+4,vVA,off+1536),"s_mov_b64 exec, -1"]
def colmax(S,dst):
    E(f"v_max3_f32 v{dst}, v{S}, v{S+1}, v{S+2}",[f"v_max3_f32 v{dst}, v{dst}, v{S+3+2*i}, v{S+4+2*i}" for i in range(6)],f"v_max_f32 v{dst}, v{dst}, v{S+15}")
def halfmax(r):
    E(f"v_mov_b32 v12, v{r}","s_nop 1",f"v_permlane32_swap_b32 v12, v{r}","s_nop 1",f"v_max_f32 v{r}, v12, v{r}")
def attention():
    E("s_mov_b32 s68, 0xffff","s_mov_b32 s69, 0xffff",
      f"s_lshl_b32 s3, {sHI}, 13",f"s_add_u32 s3, s3, {12*SLOT}",f"v_lshlrev_b32 v10, 4, v0",f"v_add_u32 v{vKA}, s3, v10",
      f"v_add_u32 v11, {12*SLOT}, v10","s_mov_b32 s92, 0x07060302",
      "v_and_b32 v10, 15, v0","v_lshlrev_b32 v10, 4, v10",f"v_lshl_add_u32 v10, v{vH}, 8, v10",f"v_add_u32 v{vVA}, s3, v10",
      [f"v_mov_b32 v{vV+i}, 0x3f803f80" for i in range(8)],[f"v_mov_b32 v{vPb+i}, 0" for i in range(8)],
      [f"v_mov_b32 v{vOa+i}, 0" for i in range(32)])
    lset(WS,vLIN,WS,vLIN,16,8,kvo([2,3,4,5]))
    stamp(); vmwait("KV1"); E("s_barrier"); stamp()
    E(rd128(vK,11,0),"s_waitcnt lgkmcnt(0)",mfma(vSa,vK,vQ,None),mfma(vSb,vK,vQ+4,None),rd128(vK,vKA,0)); bdma(5)
    colmax(vSa,10); colmax(vSb,11); halfmax(10); halfmax(11)
    E([f"v_sub_f32 v{vCa+i}, 0, v10" for i in range(16)],[f"v_sub_f32 v{vCb+i}, 0, v11" for i in range(16)],
      "s_waitcnt lgkmcnt(0)",mfma(vSa,vK,vQ,vCa),f"s_mov_b32 {sIT}, 0","s_mov_b32 s67, 16384",nop(5))
    stamp()
    E(f"s_sub_u32 s100, {sHI}, 1","s_mov_b32 s101, s100","s_setprio 1",".p2align 6","L_att:","s_mov_b64 vcc, s[100:101]")
    def pri(k):
        if k in PRI: E(f"s_cbranch_vccz L_pr{k}",f"s_setprio {0 if PRI.index(k)&1 else 2}",f"L_pr{k}:")
    for n in range(4):
        pri(2*n)
        kr=[rd128(vK,vKA,(n+1)*2048)] if n<3 else [f"v_add_u32 v{vKA}, s67, v{vKA}",rd128(vK,vKA,0)]
        phase(vSa,vPa,mfma(vSb,vK,vQ+4,vCb),mfma(vOb,vV,vPb,vOb),mfma(vOb,vV+4,vPb+4,vOb),kr,vread(n*2048),[])
        pri(2*n+1); E("s_waitcnt lgkmcnt(0)")
        tail=[f"v_add_u32 v{vVA}, s67, v{vVA}",f"s_add_u32 {sIT}, {sIT}, 1",f"s_cmp_eq_u32 {sIT}, 3","s_mov_b32 s67, 16384",f"s_cselect_b32 s67, {(-10*SLOT)&0xffffffff}, s67"] if n==3 else ldma(n) if n<2 else []
        phase(vSb,vPb,mfma(vSa,vK,vQ,vCa),mfma(vOa,vV,vPa,vOa),mfma(vOa,vV+4,vPa+4,vOa),[],tail,[])
        if n==1: E(f"s_bitcmp1_b32 {0b10111000}, {sIT}","s_cbranch_scc1 L_hm","L_mid:","s_mov_b64 vcc, s[100:101]")
    E(f"s_cmp_eq_u32 {sIT}, 3","s_cbranch_scc1 L_att")
    for k in (8,7,6,5,4,2): E(f"s_cmp_eq_u32 {sIT}, {k}",f"s_cbranch_scc1 L_h{k}")
    hi_only=lambda lab:[f"s_cmp_eq_u32 {sHI}, 0",f"s_cbranch_scc1 {lab}"]
    def arrive(idx,base,ret): E(f"s_lshl_b32 s3, {idx}, 8",f"s_add_u32 s3, s3, {base}","v_mov_b32 v10, 1",
      "s_mov_b64 exec, 1",f"buffer_atomic_add v10, off, {WS}, s3","s_mov_b64 exec, -1",f"s_branch {ret}")
    def apoll(idx,base,ret): E(f"s_lshl_b32 s3, {idx}, 8",f"s_add_u32 s3, s3, {base}","v_mov_b32 v18, 0",f"buffer_load_dword v19, v18, {WS}, s3 offen sc1",f"s_branch {ret}")
    E("s_waitcnt vmcnt(0)","s_barrier"); stamp(); bgemm([4,5]); lset(XB,vXO,WQKV,vW3,0,4,[o for c in (6,7) for o in [c*128]+[c*64*3072+p*1024 for p in range(3)]]); E("s_barrier"); stamp(); E("s_branch L_att")
    E("L_h2:","s_waitcnt vmcnt(0)","s_barrier"); stamp(); loff(); E("s_mov_b32 s6, 0x3fb8aa3b","s_mov_b32 s7, s6","s_cbranch_vccz L_h2p","s_setprio 2","L_h2p:"); bgemm([6,7]); stamp(); E("s_branch L_att")
    E("L_hm:",[[f"s_cmp_eq_u32 {sIT}, {k}",f"s_cbranch_scc1 L_hm{k}"] for k in (7,5,4)]); stamp()
    E(f"s_cmp_lg_u32 {sHI}, 0","s_cbranch_scc1 L_mid","s_waitcnt vmcnt(0)"); stamp(); arrive(sHG,WS_F2,"L_mid")
    E("L_h4:"); lset(WS,vLIN,WS,vLIN,12,12,kvo([6,7])); E("s_branch L_att")
    E("L_hm4:",f"s_cmp_lg_u32 {sW}, 7","s_cbranch_scc1 L_mid"); apoll(sHG,WS_F2,"L_mid")
    E("L_h5:"); lset(WOB,vW1,WOB,vW1,0,4,[c*65536 for c in range(8)]); stamp()
    E(f"s_cmp_lg_u32 {sW}, 7","s_cbranch_scc1 L_pd_f2","s_movk_i32 s4, 128"); poll("f2",WS,18,"s3","s4",issue=False,slp=8)
    E(f"s_lshl_b32 s3, {sHG}, 15",f"s_lshl_b32 s4, {sW}, 12","s_add_u32 s3, s3, s4",f"s_add_u32 s3, s3, {WS_ACC}",f"s_add_u32 m0, s4, {16*SLOT}",
      "v_lshrrev_b32 v10, 3, v0","v_xor_b32 v10, v0, v10","v_lshlrev_b32 v10, 4, v10","s_waitcnt vmcnt(0)","s_barrier",
      [f"buffer_load_dwordx4 v10, {WS}, s3 offen offset:{1024*k} sc1 lds" for k in range(3)]); stamp(); E("s_branch L_att")
    E("L_hm5:","s_waitcnt vmcnt(8)","s_barrier",hi_only("L_mid"),f"v_min_u32 v10, 16, v{vJ}","v_and_b32 v11, 7, v10",f"v_lshlrev_b32 v12, 2, v{vH}","v_xor_b32 v11, v11, v12",
      f"s_lshl_b32 s3, {sP}, 14",f"s_add_u32 s3, s3, {16*SLOT}","v_lshl_add_u32 v10, v10, 7, s3","v_lshl_add_u32 v12, v11, 4, v10",[f"v_xor_b32 v{12+i}, {16*i}, v12" for i in (1,2,3)],
      [rd128((160 if er&1 else vOF)+16*(er>>1)+4*i,12+i,4096*er) for er in range(4) for i in range(4)],
      "v_lshlrev_b32 v10, 4, v0","s_waitcnt lgkmcnt(0)",[f"v_pk_add_f32 {vr(vOF+2*i,2)}, {vr(vOF+2*i,2)}, {vr(160+2*i,2)}" for i in range(16)],cvt(vOF,vOF,16),"s_nop 1")
    for e in range(2): E(mfma(160+16*e,vOF+8*e,vPQ+8*e,None),mfma(160+16*e,vOF+8*e+4,vPQ+8*e+4,160+16*e))
    E(nop(11))
    for e in range(2):
        D=160+16*e
        E(f"v_add_f32 v11, 0x358637bd, v{D+8}","v_rcp_f32 v11, v11","s_nop 0",[f"v_mul_f32 v{D+i}, v11, v{D+i}" for i in range(8)],cvt(12+4*e,D,4),
          f"buffer_store_dwordx4 {vr(12+4*e,4)}, v10, {WS}, s71 offen offset:{1024*e} sc1")
    E("s_branch L_mid")
    E("L_h6:"); lset(WOA,vW1,WOA,vW1,8,16,[c*65536 for c in range(8)]); E("s_waitcnt vmcnt(0)","s_barrier"); stamp(); waddr(); wfrags(WB,[0,1,2])
    E(f"s_cmp_lg_u32 {sW}, 0","s_cbranch_scc1 L_att"); arrive(sTB,WS_F4B,"L_att")
    E("L_h7:"); loff(); stamp(); wfrags(WB,[3,4]); apoll(sTB,WS_F4B,"L_att")
    E("L_hm7:"); poll("f4b",WS,18,"s3","8",issue=False,slp=8); stamp()
    wfrags(WB,[5,6]); ofrags(WS_OB); E("s_branch L_mid")
    E("L_h8:","s_nop 1",mfma(vOb,vV,vPb,vOb),mfma(vOb,vV+4,vPb+4,vOb))
    stamp()
    wfrags(WB,[7]); E(nop(6),"s_barrier")
def ofrags(base):
    E(f"s_lshl_b32 s3, {sTB}, 16",f"s_lshl_b32 s4, {sT}, 15","s_add_u32 s3, s3, s4",f"s_lshr_b32 s4, {sW}, 1","s_lshl_b32 s4, s4, 13","s_add_u32 s3, s3, s4",
      f"s_add_u32 s3, s3, {base}","s_add_u32 s4, s3, 4096","v_lshlrev_b32 v10, 4, v0")
    for i in range(8): E(f"buffer_load_dwordx4 {vr(vOF+4*i,4)}, v10, {WS}, s{3+i//4} offen offset:{(i%4)*1024} sc1")
def finish_att():
    E(f"v_mul_u32_u24 v10, 3, v{vLIN}",f"v_add_u32 v10, {12*SLOT}, v10",f"v_xor_b32 v11, 0x1000, v{vLIN}","v_mul_u32_u24 v11, 3, v11",f"v_add_u32 v11, {12*SLOT}, v11",
      f"s_cmp_eq_u32 {sHI}, 0","s_cbranch_scc1 L_noswap",[f"v_swap_b32 v{vOa+i}, v{vOb+i}" for i in range(9)],[f"v_mov_b32 v{vQ+i}, v{vQ+4+i}" for i in range(4)],"L_noswap:",
      [f"ds_write_b128 v11, {vr(vOb+4*i,4)} offset:{16*i}" for i in range(3)],"s_waitcnt lgkmcnt(0)","s_barrier",
      [rd128(vOb+4*i,10,16*i) for i in range(3)],"s_waitcnt lgkmcnt(0)",[f"v_add_f32 v{vOa+i}, v{vOa+i}, v{vOb+i}" for i in range(9)])
    E(f"v_add_f32 v10, abs(v{vOa}), abs(v{vOa+1})",[f"v_add_f32 v10, v10, abs(v{vOa+i})" for i in range(2,9)],"s_mov_b32 s3, 0x7b800000","v_cmp_nle_f32 vcc, v10, s3")
    E("s_cmp_lg_u64 vcc, 0","s_cbranch_scc1 L_fb","L_fb_ret:")
    E(f"v_rcp_f32 v11, v{vOa+8}","v_lshlrev_b32 v10, 4, v0",
      [f"v_mul_f32 v{vOa+i}, v11, v{vOa+i}" for i in range(8)],cvt(12,vOa,4),f"buffer_store_dwordx4 v[12:15], v10, {WS}, s70 offen sc1")
    stamp()
def fallback():
    E("L_fb:","v_lshlrev_b32 v13, 4, v0","v_mov_b32 v14, 0xff800000","s_mov_b32 s3, 0","L_fb1:",
      f"buffer_load_dwordx4 {vr(vK,4)}, v13, {WS}, s3 offen sc1","s_waitcnt vmcnt(0)",mfma(vSa,vK,vQ,None),nop(12))
    colmax(vSa,10)
    E("v_max_f32 v14, v14, v10","s_add_u32 s3, s3, 2048","s_cmp_lt_u32 s3, 0x20000","s_cbranch_scc1 L_fb1")
    halfmax(14)
    E([f"v_sub_f32 v{vCa+i}, 0, v14" for i in range(16)],[f"v_mov_b32 v{vOa+i}, 0" for i in range(16)],
      "v_and_b32 v15, 15, v0","v_lshlrev_b32 v15, 4, v15",f"v_lshl_add_u32 v15, v{vH}, 8, v15","s_mov_b32 s3, 0","L_fb2:",
      f"buffer_load_dwordx4 {vr(vK,4)}, v13, {WS}, s3 offen sc1",f"s_mov_b64 exec, {MASK}",
      f"buffer_load_dwordx4 {vr(vV,4)}, v15, {WS}, s3 offen offset:1024 sc1",f"buffer_load_dwordx4 {vr(vV+4,4)}, v15, {WS}, s3 offen offset:1536 sc1",
      "s_mov_b64 exec, -1","s_waitcnt vmcnt(0)",mfma(vSa,vK,vQ,vCa),nop(12),[f"v_exp_f32 v{vSa+i}, v{vSa+i}" for i in range(16)],"s_nop 0",cvt(vPa,vSa),"s_nop 1",
      mfma(vOa,vV,vPa,vOa),mfma(vOa,vV+4,vPa+4,vOa),nop(12),"s_add_u32 s3, s3, 2048","s_cmp_lt_u32 s3, 0x20000","s_cbranch_scc1 L_fb2")
    E("s_branch L_fb_ret")
WB=lambda i:[160,168,176,184,24,40,48,120][i]
WA=lambda i:[128,136,144,152,192,200,208,96][i]
vAC=64
def wfrags(R,its=range(8)):
    for i in its:
        for ct in range(2): E(rdtr(R(i)+4*ct,16+ct,i*2048,1024))
def omfma(R):
    for i in range(8):
        for ct in range(2): E(mfma(vAC+16*ct,R(i)+4*ct,vOF+4*i,None if i==0 else vAC+16*ct))
def exchange(dst):
    pa=lambda d,x:[f"v_pk_add_f32 {vr(vAC+d+2*i,2)}, {vr(vAC+d+2*i,2)}, {vr(vAC+x+2*i,2)}" for i in range(4)]
    E([f"v_xor_b32 v{[0,5,8,9][q]}, {q<<14}, v6" for q in (1,2,3)],[f"ds_write_b128 v{[0,5,8,9][q]}, {vr(vAC+8*q+4*u,4)} offset:{q*2048+u*1024}" for q in (1,2,3) for u in range(2)],"s_waitcnt lgkmcnt(0)","s_barrier",
      [rd128(vAC+8*q+4*u,6,q*2048+u*1024) for q in (1,2,3) for u in range(2)],"s_waitcnt lgkmcnt(4)",pa(0,8),"s_waitcnt lgkmcnt(0)",pa(16,24),pa(0,16),cvt(dst,vAC,4))
def waddr():
    E(f"s_lshr_b32 s6, {sW}, 1","v_bfe_u32 v10, v0, 2, 2",f"v_lshl_add_u32 v11, v{vH}, 2, v10","v_lshlrev_b32 v11, 7, v11","v_lshrrev_b32 v10, 1, v10","v_lshl_add_u32 v11, v10, 6, v11",
      "v_bfe_u32 v10, v0, 4, 1","v_lshl_add_u32 v11, v10, 5, v11","v_and_b32 v10, 1, v0","v_lshl_add_u32 v11, v10, 4, v11","v_bfe_u32 v10, v0, 1, 1","v_lshl_add_u32 v11, v10, 3, v11",
      "s_lshl_b32 s3, s6, 5","v_xor_b32 v11, s3, v11","s_lshl_b32 s3, s6, 14","v_add_u32 v16, s3, v11","v_xor_b32 v17, 64, v16")
def outproj():
    E(f"s_lshl_b32 s3, {sHI}, 15",f"s_add_u32 s3, s3, {8*SLOT}","v_add_u32 v16, s3, v16","v_add_u32 v17, s3, v17","s_lshl_b32 s3, s6, 14","s_waitcnt vmcnt(1)")
    wfrags(WA); omfma(WB)
    E("v_lshlrev_b32 v10, 4, v0",f"s_lshl_b32 s4, {sT}, 13",
      "s_add_u32 s5, s3, s4","v_add_u32 v6, s5, v10",
      f"s_lshl_b32 s3, {sTB}, 17",f"s_lshl_b32 s4, {sT}, 16","s_add_u32 s3, s3, s4",f"s_lshl_b32 s4, {sHG}, 7","s_add_u32 s3, s3, s4","s_lshl_b32 s4, s6, 5","s_add_u32 s3, s3, s4",
      f"v_lshlrev_b32 v7, 11, v{vJ}",f"v_lshl_add_u32 v7, v{vH}, 4, v7","v_add_u32 v7, s3, v7")
    stamp()
    ofrags(WS_OA)
    exchange(12)
    stamp()
    E(f"v_add_u32 v6, {8*SLOT}, v6",f"s_mov_b32 {sTMP2}, 0x40000","L_oa:","s_waitcnt vmcnt(0)",
      f"v_max3_u32 v11, v{vOF}, v{vOF+1}, v{vOF+2}",[f"v_max3_u32 v11, v11, v{vOF+3+2*i}, v{vOF+4+2*i}" for i in range(14)],f"v_max_u32 v11, v11, v{vOF+31}",
      "v_cmp_eq_u32 vcc, -1, v11",f"s_sub_u32 {sTMP2}, {sTMP2}, 1","s_cbranch_scc1 L_oad","s_cmp_eq_u64 vcc, 0","s_cbranch_scc1 L_oad",
      [f"buffer_load_dwordx4 {vr(vOF+4*i,4)}, v10, {WS}, s{3+i//4} offen offset:{(i%4)*1024} sc1" for i in range(8)],"s_branch L_oa","L_oad:",
      f"buffer_store_dwordx4 v[12:15], v7, {OUT}, 0 offen offset:1024")
    stamp()
    omfma(WA)
    E(nop(9))
    exchange(72)
    E(f"buffer_store_dwordx4 v[72:75], v7, {OUT}, 0 offen")
    stamp()
def gen():
    setup(); phaseA(); phaseB(); attention(); finish_att(); outproj()
    if PROF: E("s_memrealtime s[72:73]","s_waitcnt lgkmcnt(0)","v_writelane_b32 v63, s72, 63",f"s_mov_b32 s72, {ts_n[0]}","v_writelane_b32 v63, s72, 61",f"s_lshl_b32 s3, s2, 11",f"s_lshl_b32 s4, {sW}, 8","s_add_u32 s3, s3, s4",f"s_add_u32 s3, s3, {WS_TS}","v_lshlrev_b32 v10, 2, v0",f"buffer_store_dword v63, v10, {WS}, s3 offen")
    if DIAG: E("L_dg:","s_sleep 1","s_memrealtime s[98:99]","s_waitcnt lgkmcnt(0)","s_sub_u32 s98, s98, s96","s_cmp_lt_u32 s98, 6000","s_cbranch_scc1 L_dg")
    E("L_end:","s_endpgm")
    fallback()
    ref=open(f"cdna_kernels/{NAME}.s.ref").read().split("\n")
    i0=[i for i,l in enumerate(ref) if l.startswith(NAME+"_kernel:")][0]; i1=ref.index("s_endpgm")
    head=[l if not l.startswith("; @launch") else "; @launch grid=(256,1,1) block=(512,1,1) lds=163840" for l in ref[:i0+1]]
    body=[l if l.endswith(":") or l.startswith(".") else "    "+l for l in L]
    out=[a for a in sys.argv[1:] if a.endswith(".s")]
    open(out[0] if out else f"cdna_kernels/{NAME}.s","w").write("\n".join(head+body+ref[i1+1:]))
gen()
```

```python
from g1 import *
vSa,vSb,vCa,vCb,vOa,vOb=64,80,96,112,128,144
vPa,vPb,vK,vV=192,200,208,212
vKA,vVA=22,23
vOF=220
MASK="s[68:69]"
def phase(S,P,m0,m1,m2,after0,after2,pre1):
    e=[f"v_exp_f32 v{S+i}, v{S+i}" for i in range(16)]; c=[f"v_perm_b32 v{P+i}, v{S+2*i+1}, v{S+2*i}, s92" for i in range(8)] if PERM else cvt(P,S)
    E(m0,after0,e[0:3],c[0],e[3],pre1,m1,e[4],c[1],e[5:7],c[2],e[7],m2,after2,e[8],c[3],e[9:11],c[4],e[11:13],c[5],e[13:16],c[6],c[7])
def vread(off): return [f"s_mov_b64 exec, {MASK}",rd128(vV,vVA,off+1024),rd128(vV+4,vVA,off+1536),"s_mov_b64 exec, -1"]
def colmax(S,dst):
    E(f"v_max3_f32 v{dst}, v{S}, v{S+1}, v{S+2}",[f"v_max3_f32 v{dst}, v{dst}, v{S+3+2*i}, v{S+4+2*i}" for i in range(6)],f"v_max_f32 v{dst}, v{dst}, v{S+15}")
def halfmax(r):
    E(f"v_mov_b32 v12, v{r}","s_nop 1",f"v_permlane32_swap_b32 v12, v{r}","s_nop 1",f"v_max_f32 v{r}, v12, v{r}")
def attention():
    E("s_mov_b32 s68, 0xffff","s_mov_b32 s69, 0xffff",
      f"s_lshl_b32 s3, {sHI}, 13",f"s_add_u32 s3, s3, {12*SLOT}",f"v_lshlrev_b32 v10, 4, v0",f"v_add_u32 v{vKA}, s3, v10",
      f"v_add_u32 v11, {12*SLOT}, v10","s_mov_b32 s92, 0x07060302",
      "v_and_b32 v10, 15, v0","v_lshlrev_b32 v10, 4, v10",f"v_lshl_add_u32 v10, v{vH}, 8, v10",f"v_add_u32 v{vVA}, s3, v10",
      [f"v_mov_b32 v{vV+i}, 0x3f803f80" for i in range(8)],[f"v_mov_b32 v{vPb+i}, 0" for i in range(8)],
      [f"v_mov_b32 v{vOa+i}, 0" for i in range(32)])
    lset(WS,vLIN,WS,vLIN,16,8,kvo([2,3,4,5]))
    stamp(); vmwait("KV1"); E("s_barrier"); stamp()
    E(rd128(vK,11,0),"s_waitcnt lgkmcnt(0)",mfma(vSa,vK,vQ,None),mfma(vSb,vK,vQ+4,None),rd128(vK,vKA,0)); bdma(5)
    colmax(vSa,10); colmax(vSb,11); halfmax(10); halfmax(11)
    E([f"v_sub_f32 v{vCa+i}, 0, v10" for i in range(16)],[f"v_sub_f32 v{vCb+i}, 0, v11" for i in range(16)],
      "s_waitcnt lgkmcnt(0)",mfma(vSa,vK,vQ,vCa),f"s_mov_b32 {sIT}, 0","s_mov_b32 s67, 16384",nop(5))
    stamp()
    E(f"s_sub_u32 s100, {sHI}, 1","s_mov_b32 s101, s100","s_setprio 1",".p2align 6","L_att:","s_mov_b64 vcc, s[100:101]")
    def pri(k):
        if k in PRI: E(f"s_cbranch_vccz L_pr{k}",f"s_setprio {0 if PRI.index(k)&1 else 2}",f"L_pr{k}:")
    for n in range(4):
        pri(2*n)
        kr=[rd128(vK,vKA,(n+1)*2048)] if n<3 else [f"v_add_u32 v{vKA}, s67, v{vKA}",rd128(vK,vKA,0)]
        phase(vSa,vPa,mfma(vSb,vK,vQ+4,vCb),mfma(vOb,vV,vPb,vOb),mfma(vOb,vV+4,vPb+4,vOb),kr,vread(n*2048),[])
        pri(2*n+1); E("s_waitcnt lgkmcnt(0)")
        tail=[f"v_add_u32 v{vVA}, s67, v{vVA}",f"s_add_u32 {sIT}, {sIT}, 1",f"s_cmp_eq_u32 {sIT}, 3","s_mov_b32 s67, 16384",f"s_cselect_b32 s67, {(-10*SLOT)&0xffffffff}, s67"] if n==3 else ldma(n) if n<2 else []
        phase(vSb,vPb,mfma(vSa,vK,vQ,vCa),mfma(vOa,vV,vPa,vOa),mfma(vOa,vV+4,vPa+4,vOa),[],tail,[])
        if n==1: E(f"s_bitcmp1_b32 {0b10111000}, {sIT}","s_cbranch_scc1 L_hm","L_mid:","s_mov_b64 vcc, s[100:101]")
    E(f"s_cmp_eq_u32 {sIT}, 3","s_cbranch_scc1 L_att")
    for k in (8,7,6,5,4,2): E(f"s_cmp_eq_u32 {sIT}, {k}",f"s_cbranch_scc1 L_h{k}")
    hi_only=lambda lab:[f"s_cmp_eq_u32 {sHI}, 0",f"s_cbranch_scc1 {lab}"]
    def arrive(idx,base,ret): E(f"s_lshl_b32 s3, {idx}, 8",f"s_add_u32 s3, s3, {base}","v_mov_b32 v10, 1",
      "s_mov_b64 exec, 1",f"buffer_atomic_add v10, off, {WS}, s3","s_mov_b64 exec, -1",f"s_branch {ret}")
    def apoll(idx,base,ret): E(f"s_lshl_b32 s3, {idx}, 8",f"s_add_u32 s3, s3, {base}","v_mov_b32 v18, 0",f"buffer_load_dword v19, v18, {WS}, s3 offen sc1",f"s_branch {ret}")
    E("s_waitcnt vmcnt(0)","s_barrier"); stamp(); bgemm([4,5]); lset(XB,vXO,WQKV,vW3,0,4,[o for c in (6,7) for o in [c*128]+[c*64*3072+p*1024 for p in range(3)]]); E("s_barrier"); stamp(); E("s_branch L_att")
    E("L_h2:","s_waitcnt vmcnt(0)","s_barrier"); stamp(); loff(); E("s_mov_b32 s6, 0x3fb8aa3b","s_mov_b32 s7, s6","s_cbranch_vccz L_h2p","s_setprio 2","L_h2p:"); bgemm([6,7]); stamp(); E("s_branch L_att")
    E("L_hm:",[[f"s_cmp_eq_u32 {sIT}, {k}",f"s_cbranch_scc1 L_hm{k}"] for k in (7,5,4)]); stamp()
    E(f"s_cmp_lg_u32 {sHI}, 0","s_cbranch_scc1 L_mid","s_waitcnt vmcnt(0)"); stamp(); arrive(sHG,WS_F2,"L_mid")
    E("L_h4:"); lset(WS,vLIN,WS,vLIN,12,12,kvo([6,7])); E("s_branch L_att")
    E("L_hm4:",f"s_cmp_lg_u32 {sW}, 7","s_cbranch_scc1 L_mid"); apoll(sHG,WS_F2,"L_mid")
    E("L_h5:"); lset(WOB,vW1,WOB,vW1,0,4,[c*65536 for c in range(8)]); stamp()
    E(f"s_cmp_lg_u32 {sW}, 7","s_cbranch_scc1 L_pd_f2","s_movk_i32 s4, 128"); poll("f2",WS,18,"s3","s4",issue=False,slp=8)
    E(f"s_lshl_b32 s3, {sHG}, 15",f"s_lshl_b32 s4, {sW}, 12","s_add_u32 s3, s3, s4",f"s_add_u32 s3, s3, {WS_ACC}",f"s_add_u32 m0, s4, {16*SLOT}",
      "v_lshrrev_b32 v10, 3, v0","v_xor_b32 v10, v0, v10","v_lshlrev_b32 v10, 4, v10","s_waitcnt vmcnt(0)","s_barrier",
      [f"buffer_load_dwordx4 v10, {WS}, s3 offen offset:{1024*k} sc1 lds" for k in range(3)]); stamp(); E("s_branch L_att")
    E("L_hm5:","s_waitcnt vmcnt(8)","s_barrier",hi_only("L_mid"),f"v_min_u32 v10, 16, v{vJ}","v_and_b32 v11, 7, v10",f"v_lshlrev_b32 v12, 2, v{vH}","v_xor_b32 v11, v11, v12",
      f"s_lshl_b32 s3, {sP}, 14",f"s_add_u32 s3, s3, {16*SLOT}","v_lshl_add_u32 v10, v10, 7, s3","v_lshl_add_u32 v12, v11, 4, v10",[f"v_xor_b32 v{12+i}, {16*i}, v12" for i in (1,2,3)],
      [rd128((160 if er&1 else vOF)+16*(er>>1)+4*i,12+i,4096*er) for er in range(4) for i in range(4)],
      "v_lshlrev_b32 v10, 4, v0","s_waitcnt lgkmcnt(0)",[f"v_pk_add_f32 {vr(vOF+2*i,2)}, {vr(vOF+2*i,2)}, {vr(160+2*i,2)}" for i in range(16)],cvt(vOF,vOF,16),"s_nop 1")
    for e in range(2): E(mfma(160+16*e,vOF+8*e,vPQ+8*e,None),mfma(160+16*e,vOF+8*e+4,vPQ+8*e+4,160+16*e))
    E(nop(11))
    for e in range(2):
        D=160+16*e
        E(f"v_add_f32 v11, 0x358637bd, v{D+8}","v_rcp_f32 v11, v11","s_nop 0",[f"v_mul_f32 v{D+i}, v11, v{D+i}" for i in range(8)],cvt(12+4*e,D,4),
          f"buffer_store_dwordx4 {vr(12+4*e,4)}, v10, {WS}, s71 offen offset:{1024*e} sc1")
    E("s_branch L_mid")
    E("L_h6:"); lset(WOA,vW1,WOA,vW1,8,16,[c*65536 for c in range(8)]); E("s_waitcnt vmcnt(0)","s_barrier"); stamp(); waddr(); wfrags(WB,[0,1,2])
    E(f"s_cmp_lg_u32 {sW}, 0","s_cbranch_scc1 L_att"); arrive(sTB,WS_F4B,"L_att")
    E("L_h7:"); loff(); stamp(); wfrags(WB,[3,4]); apoll(sTB,WS_F4B,"L_att")
    E("L_hm7:"); poll("f4b",WS,18,"s3","8",issue=False,slp=8); stamp()
    wfrags(WB,[5,6]); ofrags(WS_OB); E("s_branch L_mid")
    E("L_h8:","s_nop 1",mfma(vOb,vV,vPb,vOb),mfma(vOb,vV+4,vPb+4,vOb))
    stamp()
    wfrags(WB,[7])
OA=[104,108,112,116,32,36,216,252]
OS=int(([a[2:] for a in sys.argv if a.startswith("os")]+["16"])[0])
RS=int(([a[2:] for a in sys.argv if a.startswith("rs")]+["0"])[0])
oald=lambda:[f"buffer_load_dwordx4 {vr(OA[i],4)}, v10, {WS}, s{3+i//4} offen offset:{(i%4)*1024} sc1" for i in range(8)]
def ofrags(base,ld=True):
    E(f"s_lshl_b32 s3, {sTB}, 16",f"s_lshl_b32 s4, {sT}, 15","s_add_u32 s3, s3, s4",f"s_lshr_b32 s4, {sW}, 1","s_lshl_b32 s4, s4, 13","s_add_u32 s3, s3, s4",
      f"s_add_u32 s3, s3, {base}","s_add_u32 s4, s3, 4096","v_lshlrev_b32 v10, 4, v0")
    for i in range(8 if ld else 0): E(f"buffer_load_dwordx4 {vr(vOF+4*i,4)}, v10, {WS}, s{3+i//4} offen offset:{(i%4)*1024} sc1")
def finish_att():
    E(f"v_mul_u32_u24 v10, 3, v{vLIN}",f"v_add_u32 v10, {12*SLOT}, v10",f"v_xor_b32 v11, 0x1000, v{vLIN}","v_mul_u32_u24 v11, 3, v11",f"v_add_u32 v11, {12*SLOT}, v11",
      "s_mov_b32 s3, 0x7b800000",f"s_cmp_eq_u32 {sHI}, 0","s_nop 1","s_barrier","s_cbranch_scc1 L_lo")
    for give,keep,end in ((vOa,vOb,["s_branch L_sum","L_lo:"]),(vOb,vOa,["L_sum:"])):
        E([f"ds_write_b128 v11, {vr(give+4*i,4)} offset:{16*i}" for i in range(2)],f"ds_write_b32 v11, v{give+8} offset:32","s_waitcnt lgkmcnt(0)","s_barrier",
          [rd128(vSa+4*i,10,16*i) for i in range(2)],f"ds_read_b32 v{vSa+8}, v10 offset:32","s_waitcnt lgkmcnt(0)",
          f"v_add_f32 v{vOa+8}, v{keep+8}, v{vSa+8}",[f"v_pk_add_f32 {vr(vOa+2*i,2)}, {vr(keep+2*i,2)}, {vr(vSa+2*i,2)}" for i in range(4)],end)
    E(f"v_add_f32 v10, abs(v{vOa}), abs(v{vOa+1})",[f"v_add_f32 v10, v10, abs(v{vOa+i})" for i in range(2,9)],"v_cmp_nle_f32 vcc, v10, s3")
    E("s_cmp_lg_u64 vcc, 0","s_cbranch_scc1 L_fb","L_fb_ret:")
    E(f"v_rcp_f32 v11, v{vOa+8}","v_lshlrev_b32 v10, 4, v0",
      [f"v_mul_f32 v{vOa+i}, v11, v{vOa+i}" for i in range(8)],cvt(12,vOa,4),f"buffer_store_dwordx4 v[12:15], v10, {WS}, s70 offen sc1")
    stamp()
def fallback():
    E("L_fb:",f"s_cmp_eq_u32 {sHI}, 0","s_cbranch_scc1 L_fb0",[f"v_mov_b32 v{vQ+i}, v{vQ+4+i}" for i in range(4)],"L_fb0:","v_lshlrev_b32 v13, 4, v0","v_mov_b32 v14, 0xff800000","s_mov_b32 s3, 0","L_fb1:",
      f"buffer_load_dwordx4 {vr(vK,4)}, v13, {WS}, s3 offen sc1","s_waitcnt vmcnt(0)",mfma(vSa,vK,vQ,None),nop(12))
    colmax(vSa,10)
    E("v_max_f32 v14, v14, v10","s_add_u32 s3, s3, 2048","s_cmp_lt_u32 s3, 0x20000","s_cbranch_scc1 L_fb1")
    halfmax(14)
    E([f"v_sub_f32 v{vCa+i}, 0, v14" for i in range(16)],[f"v_mov_b32 v{vOa+i}, 0" for i in range(16)],
      "v_and_b32 v15, 15, v0","v_lshlrev_b32 v15, 4, v15",f"v_lshl_add_u32 v15, v{vH}, 8, v15","s_mov_b32 s3, 0","L_fb2:",
      f"buffer_load_dwordx4 {vr(vK,4)}, v13, {WS}, s3 offen sc1",f"s_mov_b64 exec, {MASK}",
      f"buffer_load_dwordx4 {vr(vV,4)}, v15, {WS}, s3 offen offset:1024 sc1",f"buffer_load_dwordx4 {vr(vV+4,4)}, v15, {WS}, s3 offen offset:1536 sc1",
      "s_mov_b64 exec, -1","s_waitcnt vmcnt(0)",mfma(vSa,vK,vQ,vCa),nop(12),[f"v_exp_f32 v{vSa+i}, v{vSa+i}" for i in range(16)],"s_nop 0",cvt(vPa,vSa),"s_nop 1",
      mfma(vOa,vV,vPa,vOa),mfma(vOa,vV+4,vPa+4,vOa),nop(12),"s_add_u32 s3, s3, 2048","s_cmp_lt_u32 s3, 0x20000","s_cbranch_scc1 L_fb2")
    E("s_branch L_fb_ret")
WB=lambda i:[160,168,176,184,24,40,48,120][i]
WA=lambda i:[128,136,144,152,192,200,208,96][i]
vAC=64
def wfrags(R,its=range(8)):
    for i in its:
        for ct in range(2): E(rdtr(R(i)+4*ct,16+ct,i*2048,1024))
xw=lambda qs:[f"ds_write_b128 v{[0,5,8,9][q]}, {vr(vAC+8*q+4*u,4)} offset:{q*2048+u*1024}" for q in qs for u in range(2)]
def omfma(R,O,N=None):
    E([f"v_xor_b32 v{[0,5,8,9][q]}, {q<<14}, v6" for q in (1,2,3)])
    for k in range(16):
        ct,i=1-k//8,k%8
        E(mfma(vAC+16*ct,R(i)+4*ct,O[i],None if i==0 else vAC+16*ct))
        if N: E(rdtr(N(k>>1)+4*(k&1),16+(k&1),(k>>1)*2048,1024))
        if k==11: E(nop(8),xw((2,3)))
def exchange(dst):
    pa=lambda d,x:[f"v_pk_add_f32 {vr(vAC+d+2*i,2)}, {vr(vAC+d+2*i,2)}, {vr(vAC+x+2*i,2)}" for i in range(4)]
    E(xw((1,)),"s_waitcnt lgkmcnt(0)","s_barrier",
      [rd128(vAC+8*q+4*u,6,q*2048+u*1024) for q in (1,2,3) for u in range(2)],"s_waitcnt lgkmcnt(4)",pa(0,8),"s_waitcnt lgkmcnt(0)",pa(16,24),pa(0,16),cvt(dst,vAC,4))
def waddr():
    E(f"s_lshr_b32 s6, {sW}, 1","v_bfe_u32 v10, v0, 2, 2",f"v_lshl_add_u32 v11, v{vH}, 2, v10","v_lshlrev_b32 v11, 7, v11","v_lshrrev_b32 v10, 1, v10","v_lshl_add_u32 v11, v10, 6, v11",
      "v_bfe_u32 v10, v0, 4, 1","v_lshl_add_u32 v11, v10, 5, v11","v_and_b32 v10, 1, v0","v_lshl_add_u32 v11, v10, 4, v11","v_bfe_u32 v10, v0, 1, 1","v_lshl_add_u32 v11, v10, 3, v11",
      "s_lshl_b32 s3, s6, 5","v_xor_b32 v11, s3, v11","s_lshl_b32 s3, s6, 14","v_add_u32 v16, s3, v11","v_xor_b32 v17, 64, v16")
def outproj():
    E(f"s_lshl_b32 s3, {sHI}, 15",f"s_add_u32 s3, s3, {8*SLOT}","v_add_u32 v16, s3, v16","v_add_u32 v17, s3, v17","s_lshl_b32 s3, s6, 14","s_waitcnt vmcnt(1)")
    E("v_lshlrev_b32 v10, 4, v0",f"s_lshl_b32 s4, {sT}, 13",
      "s_add_u32 s5, s3, s4","v_add_u32 v6, s5, v10",
      f"s_lshl_b32 s3, {sTB}, 17",f"s_lshl_b32 s4, {sT}, 16","s_add_u32 s3, s3, s4",f"s_lshl_b32 s4, {sHG}, 7","s_add_u32 s3, s3, s4","s_lshl_b32 s4, s6, 5","s_add_u32 s3, s3, s4",
      f"v_lshlrev_b32 v7, 11, v{vJ}",f"v_lshl_add_u32 v7, v{vH}, 4, v7","v_add_u32 v7, s3, v7")
    HY="hy" in sys.argv
    if HY: wfrags(WA)
    ofrags(WS_OA,False); omfma(WB,[vOF+4*i for i in range(8)],None if HY else WA); E(oald(),nop(4))
    stamp()
    exchange(12)
    stamp()
    E(f"v_add_u32 v6, {8*SLOT}, v6",f"s_mov_b32 {sTMP2}, 0x40000","L_oa:","s_waitcnt vmcnt(0)",
      f"v_max_u32 v11, v{OA[0]}, v{OA[0]+1}",[f"v_max3_u32 v11, v11, v{OA[i>>1]+2*(i&1)}, v{OA[i>>1]+2*(i&1)+1}" for i in range(1,16)],
      "v_cmp_eq_u32 vcc, -1, v11",f"s_sub_u32 {sTMP2}, {sTMP2}, 1","s_cbranch_scc1 L_oad","s_cmp_eq_u64 vcc, 0","s_cbranch_scc1 L_oad",
      [f"s_sleep {RS}"] if RS else [],oald(),"s_branch L_oa","L_oad:",
      f"buffer_store_dwordx4 v[12:15], v7, {OUT}, 0 offen offset:1024")
    stamp()
    omfma(WA,OA)
    E(nop(12))
    exchange(72)
    E(f"buffer_store_dwordx4 v[72:75], v7, {OUT}, 0 offen")
    stamp()
def gen():
    setup(); phaseA(); phaseB(); attention(); finish_att(); outproj()
    if PROF: E("s_memrealtime s[72:73]","s_waitcnt lgkmcnt(0)","v_writelane_b32 v63, s72, 63",f"s_mov_b32 s72, {ts_n[0]}","v_writelane_b32 v63, s72, 61",f"s_lshl_b32 s3, s2, 11",f"s_lshl_b32 s4, {sW}, 8","s_add_u32 s3, s3, s4",f"s_add_u32 s3, s3, {WS_TS}","v_lshlrev_b32 v10, 2, v0",f"buffer_store_dword v63, v10, {WS}, s3 offen")
    if DIAG: E("L_dg:","s_sleep 1","s_memrealtime s[98:99]","s_waitcnt lgkmcnt(0)","s_sub_u32 s98, s98, s96","s_cmp_lt_u32 s98, 6000","s_cbranch_scc1 L_dg")
    E("L_end:","s_endpgm")
    fallback()
    ref=open(f"cdna_kernels/{NAME}.s.ref").read().split("\n")
    i0=[i for i,l in enumerate(ref) if l.startswith(NAME+"_kernel:")][0]; i1=ref.index("s_endpgm")
    head=[l if not l.startswith("; @launch") else "; @launch grid=(256,1,1) block=(512,1,1) lds=163840" for l in ref[:i0+1]]
    body=[l if l.endswith(":") or l.startswith(".") else "    "+l for l in L]
    out=[a for a in sys.argv[1:] if a.endswith(".s")]
    open(out[0] if out else f"cdna_kernels/{NAME}.s","w").write("\n".join(head+body+ref[i1+1:]))
gen()
```
